```python
import torch

def _softmax(x, axis=-1):
    return torch.softmax(x, dim=axis)
def _gelu(x):
    return torch.nn.functional.gelu(x, approximate="tanh")
def _silu(x):
    return torch.nn.functional.silu(x)
def _sigmoid(x):
    return torch.sigmoid(x)
def _layernorm(x, axis=-1, eps=1e-5):
    m = x.mean(dim=axis, keepdim=True)
    v = x.var(dim=axis, keepdim=True, unbiased=False)
    return (x - m) / torch.sqrt(v + eps)
def _scatter_add(tgt, idx, src, axis=0):
    return tgt.clone().index_add_(axis, idx, src)
def _segment_sum(src, seg, n):
    out = torch.zeros((n,) + src.shape[1:], dtype=src.dtype)
    return out.index_add_(0, seg, src)
def _pad(x, pw):
    flat = tuple(v for pair in reversed(pw) for v in pair)
    return torch.nn.functional.pad(x, flat)

kernel_name = 'parallel_sum__ssm_conv_s5__dense_activation_relu__prompt'

def setup_inputs():

    _w = (lambda a: (lambda t: t.to(torch.bfloat16) if t.is_floating_point() else t)(torch.as_tensor(a)))
    def _A_setup():
        B, S, D = 1, 2048, 512
        P = D
        Lambda_re = -0.5 * (lambda _x: torch.exp(torch.as_tensor(_x)))((lambda *s: torch.randn(*s, dtype=torch.bfloat16) * 0.8)(P))
        Lambda_im = (lambda *s: torch.randn(*s, dtype=torch.bfloat16) * 0.8)(P) * 1.0
        B_re = (lambda *s: torch.randn(*s, dtype=torch.bfloat16) * 0.8)(P, D) * (D ** -0.5)
        B_im = (lambda *s: torch.randn(*s, dtype=torch.bfloat16) * 0.8)(P, D) * (D ** -0.5)
        C_re = (lambda *s: torch.randn(*s, dtype=torch.bfloat16) * 0.8)(D, P) * (P ** -0.5)
        C_im = (lambda *s: torch.randn(*s, dtype=torch.bfloat16) * 0.8)(D, P) * (P ** -0.5)
        log_dt = (lambda *s: torch.randn(*s, dtype=torch.bfloat16) * 0.8)(P) * 0.3 - 2.0
        Dskip = (lambda *s: torch.randn(*s, dtype=torch.bfloat16) * 0.8)(D)
        return {
            "x": _w((lambda *s: torch.randn(*s, dtype=torch.bfloat16) * 0.05)(B, S, D)),
            "Lambda_re": _w(Lambda_re),
            "Lambda_im": _w(Lambda_im),
            "B_re": _w(B_re),
            "B_im": _w(B_im),
            "C_re": _w(C_re),
            "C_im": _w(C_im),
            "log_dt": _w(log_dt),
            "Dskip": _w(Dskip),
        }
    _A_in = _A_setup()

    def _B_setup():
        B, S, D, Dff = 1, 2048, 512, 1376
        return {
            "x": _w((lambda *s: torch.randn(*s, dtype=torch.bfloat16) * 0.05)(B, S, D)),
            "w1": _w((lambda *s: torch.randn(*s, dtype=torch.bfloat16) * 0.05)(D, Dff)),
            "w2": _w((lambda *s: torch.randn(*s, dtype=torch.bfloat16) * 0.05)(Dff, D)),
        }
    _B_in = _B_setup()

    return {
        "A_x": _A_in["x"],
        "A_Lambda_re": _A_in["Lambda_re"],
        "A_Lambda_im": _A_in["Lambda_im"],
        "A_B_re": _A_in["B_re"],
        "A_B_im": _A_in["B_im"],
        "A_C_re": _A_in["C_re"],
        "A_C_im": _A_in["C_im"],
        "A_log_dt": _A_in["log_dt"],
        "A_Dskip": _A_in["Dskip"],
        "B_x": _B_in["x"],
        "B_w1": _B_in["w1"],
        "B_w2": _B_in["w2"],
    }

def reference(A_x, A_Lambda_re, A_Lambda_im, A_B_re, A_B_im, A_C_re, A_C_im, A_log_dt, A_Dskip, B_x, B_w1, B_w2):
    def _A_ref(x, Lambda_re, Lambda_im, B_re, B_im, C_re, C_im, log_dt, Dskip):
        Bsz, L, H = x.shape
        Lam = Lambda_re + 1j * Lambda_im
        Bmat = B_re + 1j * B_im
        Cmat = C_re + 1j * C_im
        dt = torch.exp(log_dt)
        Lam_bar = torch.exp(dt * Lam)
        B_bar = ((Lam_bar - 1.0) / Lam)[:, None] * Bmat
        Bu = torch.einsum("bld,pd->blp", x + 0j, B_bar)
        h = torch.zeros_like(Bu[:, 0, :])
        hs = []
        for t in range(L):
            h = Lam_bar[None, :] * h + Bu[:, t, :]
            hs.append(h)
        hseq = torch.stack(hs, 1)
        y = 2.0 * torch.einsum("blp,dp->bld", hseq, Cmat).real + x * Dskip[None, None, :]
        return y

    def _B_ref(x, w1, w2):
        h = torch.einsum("bsd,df->bsf", x, w1)
        zero = torch.zeros_like(h)
        h = torch.maximum(h, zero)
        return torch.einsum("bsf,fd->bsd", h, w2)

    x = A_x
    xn = _layernorm(x, axis=-1)
    return x + _A_ref(xn, A_Lambda_re, A_Lambda_im, A_B_re, A_B_im, A_C_re, A_C_im, A_log_dt, A_Dskip) + _B_ref(xn, B_w1, B_w2)
```

```python
import re

TRANS = ("v_exp_f32", "v_log_f32", "v_rcp_f32", "v_rsq_f32", "v_sqrt_f32", "v_sin_f32", "v_cos_f32", "v_rcp_iflag_f32")

def parse_regs(tok):
    tok = tok.strip()
    neg = tok.lstrip("-|").rstrip("|")
    m = re.fullmatch(r"([vas])(\d+)", neg)
    if m: return {m.group(1) + m.group(2)}
    m = re.fullmatch(r"([vas])\[(\d+):(\d+)\]", neg)
    if m: return {m.group(1) + str(i) for i in range(int(m.group(2)), int(m.group(3)) + 1)}
    if neg in ("vcc", "vcc_lo", "vcc_hi"): return {"vcc"}
    if neg in ("exec", "exec_lo", "exec_hi"): return {"exec"}
    if neg == "m0": return {"m0"}
    return set()

def split_ops(s):
    out, depth, cur = [], 0, ""
    for ch in s:
        if ch == "[": depth += 1
        if ch == "]": depth -= 1
        if ch == "," and depth == 0:
            out.append(cur.strip()); cur = ""
        else: cur += ch
    if cur.strip(): out.append(cur.strip())
    return out

class Ins:
    __slots__ = ("text", "op", "kind", "dst", "src", "wide_data", "lds_dma", "dpp", "srcC", "vm", "lg", "name")
    def __init__(self, text):
        self.text = text; self.name = None
        self.vm = None; self.lg = None
        t = text.split(";")[0].strip()
        self.dst = set(); self.src = set(); self.wide_data = set(); self.lds_dma = False; self.dpp = False; self.srcC = set()
        if t.endswith(":"):
            self.kind = "label"; self.op = t; return
        parts = t.split(None, 1)
        op = parts[0]; self.op = op
        rest = parts[1] if len(parts) > 1 else ""
        ops = split_ops(rest)
        mods = ""
        if ops:
            last = ops[-1].split()
            ops[-1] = last[0]; mods = " ".join(last[1:])
        R = [parse_regs(o) for o in ops]
        if op.startswith("v_mfma"):
            self.kind = "mfma"; self.dst = R[0]; self.src = R[1] | R[2] | R[3]; self.srcC = R[3]
        elif op.startswith("v_"):
            self.kind = "valu"
            self.dpp = ("quad_perm" in mods or "row_" in mods or "_dpp" in op)
            if op.startswith("v_cmp"):
                self.dst = R[0]; self.src = set().union(*R[1:])
            elif op.startswith("v_permlane"):
                self.dst = R[0] | R[1]; self.src = R[0] | R[1]
            elif op.startswith("v_readfirstlane") or op.startswith("v_readlane"):
                self.dst = R[0]; self.src = set().union(*R[1:])
            elif op in ("v_add_co_u32", "v_sub_co_u32", "v_addc_co_u32"):
                self.dst = R[0] | R[1]; self.src = set().union(*R[2:])
            else:
                self.dst = R[0]; self.src = set().union(*R[1:]) if len(R) > 1 else set()
                if op.startswith("v_cndmask") and len(R) == 3: self.src |= {"vcc"}
                if op.startswith("v_fmac") or op.startswith("v_dot2c") or self.dpp: self.src |= R[0]
        elif op.startswith("buffer_") or op.startswith("global_"):
            self.kind = "vmem"
            is_lds = (" lds" in (" " + mods)) or "_lds_" in op
            self.lds_dma = is_lds
            if "store" in op or "atomic" in op:
                self.src = set().union(*R)
                if "x3" in op or "x4" in op:
                    self.wide_data = R[0] if op.startswith("buffer_") else R[1]
            elif is_lds:
                self.src = set().union(*R) | {"m0"}
            else:
                self.dst = R[0]; self.src = set().union(*R[1:])
        elif op.startswith("ds_"):
            self.kind = "ds"
            if "read" in op or "permute" in op or "swizzle" in op:
                self.dst = R[0]; self.src = set().union(*R[1:])
            else:
                self.src = set().union(*R)
                if "b128" in op or "b96" in op: self.wide_data = R[1]
        elif op.startswith("s_load") or op.startswith("s_buffer_load") or op in ("s_memtime", "s_memrealtime"):
            self.kind = "smem"; self.dst = R[0]; self.src = set().union(*R[1:]) if len(R) > 1 else set()
        elif op.startswith("s_cbranch") or op == "s_branch":
            self.kind = "branch"
        elif op == "s_nop":
            self.kind = "nop"
        elif op in ("s_waitcnt", "s_barrier", "s_endpgm", "s_sleep", "s_setprio"):
            self.kind = "misc"
        elif op.startswith("s_cmp") or op.startswith("s_bitcmp"):
            self.kind = "salu"; self.src = set().union(*R)
        elif op.startswith("s_"):
            self.kind = "salu"; self.dst = R[0]; self.src = set().union(*R[1:]) if len(R) > 1 else set()
            if "saveexec" in op: self.dst |= {"exec"}; self.src |= {"exec"}
        else:
            raise ValueError("cannot parse: " + text)

class Wait:
    kind = "wait"
    def __init__(self, toks, force=False): self.toks = [t for t in toks if t is not None]; self.force = force

class Raw:
    kind = "raw"
    def __init__(self, lines): self.lines = lines

class Prog:
    def __init__(self):
        self.items = []
        self.nlab = 0
    def I(self, text):
        ins = Ins(text); self.items.append(ins); return ins
    def __call__(self, text):
        last = None
        for ln in text.split("\n"):
            ln = ln.strip()
            if ln and not ln.startswith(";"): last = self.I(ln)
        return last
    def wait(self, *toks):
        flat = []
        for t in toks:
            if isinstance(t, (list, tuple)): flat += list(t)
            else: flat.append(t)
        self.items.append(Wait(flat))
    def raw(self, text): self.items.append(Raw([l.strip() for l in text.split("\n") if l.strip()]))
    def label(self, base="L"):
        self.nlab += 1; return f"{base}_{id(self) % 1000}_{self.nlab}"
    def extend(self, other): self.items += other.items

def interleave(main, fills, start=0, every=1, per=1):
    out = []; fi = 0; n = 0
    def take(k):
        nonlocal fi
        c = 0
        while fi < len(fills) and c < k:
            it = fills[fi]; out.append(it); fi += 1
            if it.kind not in ("wait",) and not (it.kind == "salu"): c += 1
    for it in main:
        out.append(it)
        if it.kind == "mfma":
            if n >= start and (n - start) % every == 0: take(per)
            n += 1
    while fi < len(fills): out.append(fills[fi]); fi += 1
    return out

def finalize(items, verbose=False):
    seq = []
    vm_n = 0; lg_n = 0; vm_done = -1; lg_done = -1
    for it in items:
        if it.kind == "wait":
            nv = max([t.vm for t in it.toks if t.vm is not None], default=-1)
            nl = max([t.lg for t in it.toks if t.lg is not None], default=-1)
            for t in it.toks:
                assert t.vm is not None or t.lg is not None, "wait on an instruction not yet issued / not memory: " + t.text
            parts = []
            if nv > vm_done:
                c = min(vm_n - 1 - nv, 63); parts.append(f"vmcnt({c})"); vm_done = vm_n - 1 - c
            if nl > lg_done:
                c = min(lg_n - 1 - nl, 15); parts.append(f"lgkmcnt({c})"); lg_done = lg_n - 1 - c
            if parts: seq.append(Ins("s_waitcnt " + " ".join(parts)))
            continue
        if it.kind == "raw":
            for l in it.lines:
                x = Ins(l); seq.append(x)
            continue
        if it.kind == "vmem": it.vm = vm_n; vm_n += 1
        elif it.kind == "ds": it.lg = lg_n; lg_n += 1
        elif it.kind == "misc" and it.op == "s_waitcnt":
            m = re.search(r"vmcnt\((\d+)\)", it.text)
            if m: vm_done = max(vm_done, vm_n - 1 - int(m.group(1)))
            m = re.search(r"lgkmcnt\((\d+)\)", it.text)
            if m: lg_done = max(lg_done, lg_n - 1 - int(m.group(1)))
        seq.append(it)
    out = []
    pos = 0
    last = {}
    def need(cls, regs, ws):
        r = 0
        for x in regs:
            p = last.get((cls, x))
            if p is not None: r = max(r, ws - (pos - p - 1))
        return r
    nnop = 0
    for it in seq:
        k = it.kind
        req = 0
        vs = {x for x in it.src if x[0] in "va" and x != "vcc"} if k not in ("label",) else set()
        ss = {x for x in it.src if x[0] == "s" or x == "vcc"} if k not in ("label",) else set()
        vd = {x for x in it.dst if x[0] in "va" and x != "vcc"} if k not in ("label",) else set()
        if k == "mfma":
            req = max(req, need("valu_v", vs, 2), need("mfma_d", vs - it.srcC, 12), need("valu_exec", {"exec"}, 4))
            if it.srcC and it.srcC != it.dst: req = max(req, need("mfma_d", it.srcC, 10))
            if not it.srcC or it.srcC != it.dst: req = max(req, need("mfma_d", vd, 12))
        elif k == "valu":
            req = max(req, need("mfma_d", vs | vd, 12), need("mfma_c", vd, 7), need("valu_s", ss, 2), need("wide", vd, 2))
            if it.op not in TRANS: req = max(req, need("trans", vs, 1))
            else: req = max(req, need("trans", vs, 1))
            if it.dpp or it.op.startswith("v_permlane"): req = max(req, need("valu_v", vs, 2))
            if it.op.startswith("v_readfirstlane") or it.op.startswith("v_readlane"): req = max(req, need("valu_v", vs, 1))
        elif k in ("vmem", "ds"):
            req = max(req, need("mfma_d", vs | vd, 12), need("valu_s", ss, 5), need("wide", vd, 1), need("trans", vs, 1))
            if it.lds_dma: req = max(req, need("salu_m0", {"m0"}, 1))
        if req > 0:
            while req > 0:
                n = min(req, 16); out.append(Ins(f"s_nop {n-1}")); pos += n; req -= n; nnop += 1
        out.append(it)
        if k == "label": continue
        if k == "mfma":
            for x in it.dst: last[("mfma_d", x)] = pos
            for x in it.srcC: last[("mfma_c", x)] = pos
        elif k == "valu":
            for x in it.dst:
                if x[0] in "va" and x != "vcc":
                    last[("valu_v", x)] = pos
                    if it.op in TRANS: last[("trans", x)] = pos
                    else: last.pop(("trans", x), None)
                elif x == "exec": last[("valu_exec", x)] = pos
                else: last[("valu_s", x)] = pos
        elif k == "salu":
            if "m0" in it.dst: last[("salu_m0", "m0")] = pos
            for x in it.dst: last.pop(("valu_s", x), None)
        for x in it.wide_data: last[("wide", x)] = pos
        pos += (int(it.text.split()[1]) + 1) if k == "nop" else 1
    lines = []
    for it in out:
        lines.append(it.text if it.kind == "label" else "    " + it.text)
    if verbose: print("instructions:", len(out), "nops inserted:", nnop)
    return lines
```

```python
import sys, math
sys.path.insert(0, "dev")
from asmlib import *

NAME = "parallel_sum__ssm_conv_s5__dense_activation_relu__prompt"
XN, BASE, HOFF, AGG, FLAGS, GOFF, TS, WS_SIZE = 0, 0x200000, 0x600000, 0xF60000, 0xF80000, 0xF90000, 0xFA0000, 0x1000000
HRG = 150 * 1024
WSLO, WSHI, F0A, F1A, PRIV, SCR = 0, 32768, 65536, 98304, 131072, 155648
PSTR = 6144
RBRE, RBIM, RC, RW1, RW2, RWS, ROUT = "s[36:39]", "s[40:43]", "s[44:47]", "s[48:51]", "s[52:55]", "s[56:59]", "s[60:63]"
sRB, sCG, sW, sTAG, sBUD, sRG = "s64", "s65", "s66", "s67", "s68", "s69"
vL = "v1"
vI = [2, 3, 4, 5]; vF = [6, 7, 8, 9]; vW = [10, 11, 12, 13]
ACC_RE, ACC_IM, ACC_F = 16, 32, [48, 64, 80]
RING = 96
vRI = [128, 129, 130, 131]; vTF = [132, 133]; vT2 = [[134, 135], [136, 137], [138, 139]]
vL16 = 140; vRC = [141, 142, 143, 144]; vL16B = 145
pL, pL8, pL16, pL32, pC2, pQ, pPRE, pPIM, pV0, pV1 = 146, 148, 150, 152, 154, 156, 172, 174, 176, 178
pT, pT2, pW, pCRE, pCIM, pKRE, pKIM, pS, GRE, LBK, CVT = 180, 182, 184, 192, 194, 196, 198, 200, 202, 218, 226
vHW, vHR = 242, 244
vT = [246, 247, 248, 249, 250, 251, 252, 253, 254, 255]
XA, CA = 0, 128

def v(n, c=1): return f"v{n}" if c == 1 else f"v[{n}:{n+c-1}]"
def a(n, c=1): return f"a{n}" if c == 1 else f"a[{n}:{n+c-1}]"
def P(n): return f"v[{n}:{n+1}]"

class Gen:
    def __init__(self, stamps=False, kname=None, **opt):
        self.p = Prog(); self.stamps = stamps; self.nst = 0; self.opt = opt
        self.kname = kname or NAME + "_kernel"
    def stamp(self):
        if self.stamps and self.nst < 10:
            self.p(f"s_memtime s[{82+2*self.nst}:{83+2*self.nst}]"); self.nst += 1
    def cmul(self, z, x, y):
        assert z != x and z != y
        self.p(f"v_pk_mul_f32 {P(z)}, {P(x)}, {P(y)} op_sel:[0,0] op_sel_hi:[0,1]")
        self.p(f"v_pk_fma_f32 {P(z)}, {P(x)}, {P(y)}, {P(z)} op_sel:[1,1,0] op_sel_hi:[1,0,1] neg_lo:[1,0,0]")
    def cfma(self, z, x, y, c):
        assert z != x and z != y
        self.p(f"v_pk_fma_f32 {P(z)}, {P(x)}, {P(y)}, {P(c)} op_sel:[0,0,0] op_sel_hi:[0,1,1]")
        self.p(f"v_pk_fma_f32 {P(z)}, {P(x)}, {P(y)}, {P(z)} op_sel:[1,1,0] op_sel_hi:[1,0,1] neg_lo:[1,0,0]")
    def bf16r(self, d, s):
        self.p(f"v_cvt_pk_bf16_f32 v{d}, v{s}, v{s}")
        self.p(f"v_and_b32 v{d}, 0xffff0000, v{d}")
    def srd(self, r, lo, hi, n):
        b = int(r[2:r.index(":")])
        self.p(f"s_mov_b32 s{b}, {lo}\ns_mov_b32 s{b+1}, {hi}\ns_mov_b32 s{b+2}, {n}\ns_mov_b32 s{b+3}, 0x20000")
    def dma4(self, vregs, srd, soff, m0expr, n=4, p=None):
        p = p or self.p
        p(m0expr)
        toks = []
        for g in range(n):
            off = f" offset:{g*1024}" if g else ""
            toks.append(p(f"buffer_load_dwordx4 v{vregs[g]}, {srd}, {soff} offen{off} lds"))
        return toks
    def poll(self, loads, checks, pre=None):
        p = self.p
        toks = pre if pre is not None else [p(l) for l in loads]
        p.wait(toks)
        for c in checks: p(c)
        d, r = p.label("done"), p.label("retry")
        p(f"s_cbranch_vccz {d}")
        p.raw(f"{r}:\ns_cmp_eq_u32 {sBUD}, 0\ns_cbranch_scc1 {d}\ns_sub_u32 {sBUD}, {sBUD}, 1\n" + "\n".join(loads) + "\ns_waitcnt vmcnt(0)\n" + "\n".join(checks) + f"\ns_cbranch_vccnz {r}")
        p(f"{d}:")

    def prologue(self):
        p = self.p
        p("s_cmp_ge_u32 s2, 0x100\ns_cbranch_scc1 L_END")
        p("s_load_dwordx16 s[4:19], s[0:1], 0\ns_load_dwordx8 s[20:27], s[0:1], 64\ns_load_dwordx4 s[28:31], s[0:1], 96\ns_load_dwordx2 s[32:33], s[0:1], 112")
        if self.stamps: p("s_memrealtime s[80:81]"); self.stamp()
        p("v_and_b32 v1, 63, v0\nv_lshrrev_b32 v14, 6, v0")
        p(f"s_and_b32 s3, s2, 7\ns_lshr_b32 s34, s2, 3")
        p(f"v_readfirstlane_b32 {sW}, v14")
        p(f"""s_lshr_b32 {sRB}, s3, 1
              s_lshl_b32 {sRB}, {sRB}, 2
              s_lshr_b32 s35, s34, 3
              s_add_u32 {sRB}, {sRB}, s35
              s_and_b32 {sCG}, s3, 1
              s_lshl_b32 {sCG}, {sCG}, 3
              s_and_b32 s35, s34, 7
              s_add_u32 {sCG}, {sCG}, s35
              s_lshl_b32 {sRG}, {sRB}, 2
              s_add_u32 {sRG}, {sRG}, {sW}
              s_mov_b32 {sBUD}, 0x10000""")
        t = vT
        p(f"""v_lshrrev_b32 v14, 3, v1
              v_and_b32 v15, 7, v1
              v_lshrrev_b32 v{t[0]}, 5, v1
              v_lshlrev_b32 v{t[0]}, 4, v{t[0]}
              v_and_b32 v{t[1]}, 8, v1
              v_bfe_u32 v{t[2]}, v1, 4, 1
              v_or3_b32 v{t[0]}, v{t[0]}, v{t[1]}, v{t[2]}""")
        p(f"""s_lshr_b32 s72, {sCG}, 2
              s_lshl_b32 s3, {sRB}, 2
              s_add_u32 s72, s72, s3
              s_and_b32 s71, {sCG}, 3
              s_lshl_b32 s70, s72, 5
              s_lshl_b32 s3, s71, 1
              s_add_u32 s70, s70, s3
              s_lshl_b32 s73, {sW}, 8""")
        p(f"""v_add_u32 v{t[3]}, s70, v{t[0]}
              v_lshlrev_b32 v{t[3]}, 10, v{t[3]}
              v_lshl_add_u32 v{t[4]}, v15, 4, s73
              v_add_u32 v{t[5]}, v{t[3]}, v{t[4]}""")
        p(f"""v_and_b32 v{t[6]}, 31, v1
              s_lshl_b32 s3, {sCG}, 6
              v_lshl_add_u32 v{t[7]}, v{t[6]}, 1, s3""")
        p(f"""v_lshrrev_b32 v{t[8]}, 4, v1
              v_xor_b32 v{t[8]}, v{t[8]}, v15
              v_lshlrev_b32 v{t[8]}, 4, v{t[8]}
              v_lshl_add_u32 v{vI[0]}, v14, 10, v{t[8]}
              v_xor_b32 v{vI[1]}, 64, v{vI[0]}
              v_add_u32 v{vI[2]}, {7168*2}, v{vI[0]}
              v_add_u32 v{vI[3]}, {7168*3}, v{vI[1]}
              v_add_u32 v{vI[1]}, 7168, v{vI[1]}""")
        p("s_waitcnt lgkmcnt(0)")
        self.stamp()
        self.tx = [p(f"global_load_dwordx4 v[16:19], v{t[5]}, s[4:5]"),
                   p(f"global_load_dwordx4 v[20:23], v{t[5]}, s[4:5] offset:128"),
                   p(f"global_load_ushort v48, v{t[3]}, s[4:5]")]
        p(f"s_add_u32 s34, s32, {GOFF}\ns_addc_u32 s35, s33, 0\ns_load_dword {sTAG}, s[34:35], 0")
        self.srd(RBRE, "s10", "s11", 524288); self.srd(RBIM, "s12", "s13", 524288)
        p(f"s_lshl_b32 s74, {sCG}, 15\ns_add_u32 s74, s74, s73\ns_add_u32 s75, s74, 128\ns_lshl_b32 s76, {sW}, 13")
        self.tws = []
        self.tws += self.dma4(vI, RBRE, "s74", "s_mov_b32 m0, s76")
        self.tws += self.dma4(vI, RBIM, "s74", f"s_add_u32 m0, s76, {WSHI}")
        self.tws += self.dma4(vI, RBRE, "s75", "s_add_u32 m0, s76, 4096")
        self.tws += self.dma4(vI, RBIM, "s75", f"s_add_u32 m0, s76, {WSHI+4096}")
        self.tdp = [p(f"global_load_dwordx4 v[24:27], v{t[4]}, s[20:21]"),
                    p(f"global_load_dwordx4 v[28:31], v{t[4]}, s[20:21] offset:128"),
                    p(f"global_load_ushort v{pT}, v{t[7]}, s[6:7]"),
                    p(f"global_load_ushort v{pT+1}, v{t[7]}, s[8:9]"),
                    p(f"global_load_ushort v{pT2}, v{t[7]}, s[18:19]")]
        self.srd(RW1, "s24", "s25", 512 * 2752); self.srd(RW2, "s26", "s27", 1376 * 1024)
        self.srd(RWS, "s32", "s33", WS_SIZE); self.srd(ROUT, "s28", "s29", 2048 * 512 * 4)
        p(f"s_cmp_ge_u32 {sW}, 2\ns_cselect_b32 s44, s16, s14\ns_cselect_b32 s45, s17, s15\ns_mov_b32 s46, 524288\ns_mov_b32 s47, 0x20000")
        p(f"""v_lshrrev_b32 v{t[8]}, 2, v1
              v_mul_u32_u24 v{t[8]}, 2752, v{t[8]}
              v_and_b32 v{t[9]}, 3, v1
              v_lshl_add_u32 v{vF[0]}, v{t[9]}, 4, v{t[8]}
              v_add_u32 v{vF[1]}, {43008}, v{vF[0]}
              v_add_u32 v{vF[2]}, {43008*2}, v{vF[0]}
              v_add_u32 v{vF[3]}, {43008*3}, v{vF[0]}""")
        p(f"""v_lshlrev_b32 v{t[1]}, 9, v15
              v_lshl_add_u32 v{t[1]}, v14, 4, v{t[1]}
              v_lshlrev_b32 v{t[2]}, 11, v{t[0]}
              v_lshl_add_u32 v{t[2]}, v15, 4, v{t[2]}""")
        p(f"""s_lshl_b32 s3, {sW}, 6
              s_add_u32 s3, s3, {SCR}
              v_lshl_add_u32 v{t[3]}, v14, 3, s3
              v_lshlrev_b32 v{t[4]}, 3, v14
              v_add_u32 v{t[4]}, {SCR}, v{t[4]}""")

    def phase0(self):
        p = self.p; t = vT
        F = 32
        p.wait(self.tx)
        self.stamp()
        p("v_lshlrev_b32 v48, 16, v48")
        for n in range(8):
            p(f"v_lshlrev_b32 v{F+2*n}, 16, v{16+n}\nv_and_b32 v{F+2*n+1}, 0xffff0000, v{16+n}")
        D = 50
        for n in range(8):
            p(f"v_pk_add_f32 {P(D+2*n)}, {P(F+2*n)}, {P(48)} op_sel_hi:[1,0] neg_lo:[0,1] neg_hi:[0,1]")
        p(f"v_pk_add_f32 {P(66)}, {P(D)}, {P(D+2)}\nv_pk_mul_f32 {P(68)}, {P(D)}, {P(D)}")
        p(f"v_pk_fma_f32 {P(68)}, {P(D+2)}, {P(D+2)}, {P(68)}")
        for n in range(2, 8):
            p(f"v_pk_add_f32 {P(66)}, {P(66)}, {P(D+2*n)}\nv_pk_fma_f32 {P(68)}, {P(D+2*n)}, {P(D+2*n)}, {P(68)}")
        p("v_add_f32 v70, v66, v67\nv_add_f32 v71, v68, v69")
        for m in ("quad_perm:[1,0,3,2]", "quad_perm:[2,3,0,1]", "row_half_mirror"):
            p(f"v_add_f32_dpp v70, v70, v70 {m} row_mask:0xf bank_mask:0xf\nv_add_f32_dpp v71, v71, v71 {m} row_mask:0xf bank_mask:0xf")
        w = p(f"ds_write_b64 v{t[3]}, v[70:71]")
        p.wait(w); p("s_barrier")
        r0 = p(f"ds_read2_b64 v[72:75], v{t[4]} offset0:0 offset1:8")
        r1 = p(f"ds_read2_b64 v[76:79], v{t[4]} offset0:16 offset1:24")
        p.wait(r0, r1)
        p(f"""v_pk_add_f32 v[72:73], v[72:73], v[74:75]
              v_pk_add_f32 v[76:77], v[76:77], v[78:79]
              v_pk_add_f32 v[72:73], v[72:73], v[76:77]
              v_mul_f32 v72, 0x3b000000, v72
              v_mul_f32 v73, 0x3b000000, v73
              v_fma_f32 v73, -v72, v72, v73
              v_add_f32 v72, v72, v48""")
        p("v_cvt_pk_bf16_f32 v74, v72, v73\nv_lshlrev_b32 v76, 16, v74\nv_and_b32 v75, 0xffff0000, v74")
        p("v_add_f32 v75, 0x3727c5ac, v75")
        self.bf16r(75, 75)
        p("v_sqrt_f32 v75, v75")
        self.bf16r(75, 75)
        p("v_rcp_f32 v77, v75")
        X = 80
        for n in range(8):
            p(f"v_pk_add_f32 {P(D+2*n)}, {P(F+2*n)}, {P(76)} op_sel_hi:[1,0] neg_lo:[0,1] neg_hi:[0,1]")
        for n in range(8):
            p(f"v_cvt_pk_bf16_f32 v{X+n}, v{D+2*n}, v{D+2*n+1}")
        for n in range(8):
            p(f"v_lshlrev_b32 v{D+2*n}, 16, v{X+n}\nv_and_b32 v{D+2*n+1}, 0xffff0000, v{X+n}")
        for n in range(8):
            p(f"v_pk_mul_f32 {P(D+2*n)}, {P(D+2*n)}, {P(76)} op_sel:[0,1] op_sel_hi:[1,1]")
        for n in range(8):
            p(f"v_cvt_pk_bf16_f32 v{X+n}, v{D+2*n}, v{D+2*n+1}")
        p(f"""s_lshl_b32 s77, s72, 15
              s_lshl_b32 s3, {sW}, 13
              s_add_u32 s77, s77, s3
              s_lshl_b32 s3, s71, 7
              s_add_u32 s77, s77, s3
              s_add_u32 s78, s77, 4096""")
        self.txn = [p(f"buffer_store_dwordx4 v[80:83], v{t[1]}, {RWS}, s77 offen sc1"),
                    p(f"buffer_store_dwordx4 v[84:87], v{t[1]}, {RWS}, s78 offen sc1")]
        self.stamp()
        p(f"""s_mul_i32 s79, {sCG}, 3
              s_lshl_b32 s3, {sCG}, 1
              s_add_u32 s3, s3, 11
              s_cmp_lt_u32 {sCG}, 11
              s_cselect_b32 s79, s79, s3
              s_cselect_b32 s3, 2, 1
              s_add_u32 s34, s79, s3""")
        p("s_mov_b32 s4, s79\ns_add_u32 s5, s79, 1\ns_mov_b32 s6, s34")
        self.tF = [[], [], []]
        self.fdma(0, F0A); self.fdma(1, F1A)
        p.wait(self.tdp[:2])
        for n in range(8):
            p(f"v_lshlrev_b32 v{D+2*n}, 16, v{X+n}\nv_and_b32 v{D+2*n+1}, 0xffff0000, v{X+n}")
            p(f"v_lshlrev_b32 v{88}, 16, v{24+n}\nv_and_b32 v{89}, 0xffff0000, v{24+n}")
            p(f"v_pk_mul_f32 {P(D+2*n)}, {P(D+2*n)}, {P(88)}")
            p(f"v_cvt_pk_bf16_f32 v90, v{D+2*n}, v{D+2*n+1}")
            p(f"v_lshlrev_b32 v{D+2*n}, 16, v90\nv_and_b32 v{D+2*n+1}, 0xffff0000, v90")
            p(f"v_pk_add_f32 {P(F+2*n)}, {P(F+2*n)}, {P(D+2*n)}")
        p(f"s_lshl_b32 s77, s70, 11\ns_lshl_b32 s3, {sW}, 9\ns_add_u32 s77, s77, s3\ns_add_u32 s77, s77, {BASE}")
        p.wait(self.txn, self.tws)
        p("s_waitcnt lgkmcnt(0)")
        p(f"s_mul_i32 {sTAG}, {sTAG}, 0x19660d\ns_add_u32 {sTAG}, {sTAG}, 0x3c6ef35f")
        p("s_barrier")
        self.flag(0)
        self.tbase = [p(f"buffer_store_dwordx4 v[{F+4*n}:{F+4*n+3}], v{t[2]}, {RWS}, s77 offen offset:{(n>>1)*256+(n&1)*128} sc1") for n in range(4)]
        self.stamp()

    def fdma(self, i, dst, p=None):
        p = p or self.p
        p(f"s_mul_i32 s34, {sW}, {128*2752}\ns_lshl_b32 s3, s{4+i}, 6\ns_add_u32 s34, s34, s3\ns_add_u32 s35, s34, {64*2752}\ns_lshl_b32 s3, {sW}, 13")
        self.tF[i] += self.dma4(vF, RW1, "s34", f"s_add_u32 m0, s3, {dst}", p=p)
        self.tF[i] += self.dma4(vF, RW1, "s35", f"s_add_u32 m0, s3, {dst+4096}", p=p)

    def flag(self, kind):
        p = self.p
        sk = p.label("nf")
        p(f"s_cmp_lg_u32 {sW}, 0\ns_cbranch_scc1 {sk}")
        p.raw(f"""s_lshl_b32 s3, {sRB}, 9
                  s_lshl_b32 s34, {sCG}, 2
                  s_add_u32 s3, s3, s34
                  s_add_u32 s3, s3, {FLAGS + kind*128}
                  v_mov_b32 v14, {sTAG}
                  v_mov_b32 v15, 0
                  s_mov_b64 exec, 1
                  buffer_store_dword v14, v15, {RWS}, s3 offen sc1
                  s_mov_b64 exec, -1""")
        p(f"{sk}:")

    def addrs(self):
        p = self.p; t = vT
        p(f"""v_and_b32 v{t[0]}, 31, v1
              v_lshrrev_b32 v{t[1]}, 5, v1
              v_bfe_u32 v{t[5]}, v1, 2, 2
              v_and_b32 v{t[3]}, 3, v1
              v_bfe_u32 v{t[4]}, v1, 4, 1
              v_bfe_u32 v{t[6]}, v1, 1, 3
              v_xor_b32 v{t[6]}, v{t[6]}, v{t[1]}""")
        p(f"""v_lshlrev_b32 v{vRI[0]}, 7, v{t[0]}
              v_lshl_add_u32 v{vRI[0]}, v{t[6]}, 4, v{vRI[0]}
              v_xor_b32 v{vRI[1]}, 32, v{vRI[0]}
              v_xor_b32 v{vRI[2]}, 64, v{vRI[0]}
              v_xor_b32 v{vRI[3]}, 96, v{vRI[0]}""")
        p(f"s_mul_i32 s7, {sW}, {PSTR}\ns_add_u32 s7, s7, {PRIV}\ns_lshl_b32 s8, {sW}, 13")
        p(f"""v_lshlrev_b32 v{vHW}, 6, v{t[0]}
              v_lshl_add_u32 v{vHW}, v{t[6]}, 3, v{vHW}
              v_add_u32 v{vHW}, s7, v{vHW}""")
        p(f"v_lshl_add_u32 v{t[7]}, v{t[1]}, 3, v{t[5]}")
        p(f"""v_and_b32 v{t[8]}, 1, v1
              v_bfe_u32 v{t[9]}, v1, 1, 1
              v_lshl_add_u32 v{t[8]}, v{t[8]}, 1, v{t[9]}
              v_lshlrev_b32 v{t[8]}, 3, v{t[8]}
              v_lshl_add_u32 v{t[8]}, v{t[4]}, 5, v{t[8]}
              v_lshl_add_u32 v{vTF[1]}, v{t[7]}, 6, v{t[8]}
              v_add_u32 v{vTF[0]}, {F0A}, v{vTF[1]}""")
        p(f"""v_lshlrev_b32 v{t[8]}, 3, v{t[3]}
              v_lshl_add_u32 v{t[8]}, v{t[4]}, 5, v{t[8]}
              v_bfe_u32 v{t[9]}, v1, 3, 1
              v_lshl_add_u32 v{t[8]}, v{t[9]}, 6, v{t[8]}
              v_lshl_add_u32 v{t[8]}, v{t[7]}, 7, v{t[8]}
              v_add_u32 v{vT2[0][0]}, s8, v{t[8]}
              v_add_u32 v{vT2[2][0]}, s7, v{t[8]}
              v_xor_b32 v{t[8]}, 64, v{t[8]}
              v_add_u32 v{vT2[0][1]}, s8, v{t[8]}
              v_add_u32 v{vT2[2][1]}, s7, v{t[8]}
              v_add_u32 v{vT2[1][0]}, 0x10000, v{vT2[0][0]}
              v_add_u32 v{vT2[1][1]}, 0x10000, v{vT2[0][1]}""")
        p(f"""v_lshl_add_u32 v{t[8]}, v{t[4]}, 2, v{t[3]}
              v_lshl_add_u32 v{t[9]}, v{t[1]}, 2, v{t[9]}
              v_xor_b32 v{t[8]}, v{t[8]}, v{t[9]}
              v_lshlrev_b32 v{t[8]}, 3, v{t[8]}
              v_lshl_add_u32 v{t[8]}, v{t[7]}, 6, v{t[8]}
              v_add_u32 v{vHR}, s7, v{t[8]}
              v_xor_b32 v{t[8]}, 16, v{t[8]}
              v_add_u32 v{t[8]}, 256, v{t[8]}
              v_add_u32 v{vHR+1}, s7, v{t[8]}""")
        p(f"v_lshlrev_b32 v{vL16}, 4, v1\nv_add_u32 v{vL16B}, {HRG}, v{vL16}")
        p(f"""v_lshrrev_b32 v{t[8]}, 3, v1
              v_and_b32 v{t[9]}, 7, v1
              v_lshlrev_b32 v{t[4]}, 2, v{t[4]}
              v_xor_b32 v{t[9]}, v{t[9]}, v{t[4]}
              v_lshlrev_b32 v{t[9]}, 4, v{t[9]}
              v_lshl_add_u32 v{vW[0]}, v{t[8]}, 10, v{t[9]}
              v_add_u32 v{vW[1]}, 7168, v{vW[0]}
              v_add_u32 v{vW[2]}, {7168*2}, v{vW[0]}
              v_add_u32 v{vW[3]}, {7168*3}, v{vW[0]}""")

    def params(self):
        p = self.p; t = vT
        p.wait(self.tdp)
        LOG2E = "0x3fb8aa3b"
        p(f"""v_lshlrev_b32 v{pT}, 16, v{pT}
              v_lshlrev_b32 v{pT+1}, 16, v{pT+1}
              v_lshlrev_b32 v{pT2}, 16, v{pT2}
              v_mul_f32 v{pT2}, {LOG2E}, v{pT2}
              v_exp_f32 v{pT2}, v{pT2}""")
        self.bf16r(pT2, pT2)
        p(f"""v_mul_f32 v{pW}, v{pT2}, v{pT}
              v_mul_f32 v{pW+1}, v{pT2}, v{pT+1}
              v_mul_f32 v{pW}, {LOG2E}, v{pW}
              v_mul_f32 v{pW+1}, 0.15915494, v{pW+1}
              v_exp_f32 v{pW}, v{pW}
              v_fract_f32 v{pW+1}, v{pW+1}
              v_cos_f32 v{pW+2}, v{pW+1}
              v_sin_f32 v{pW+3}, v{pW+1}
              v_mul_f32 v{pW+4}, v{pT}, v{pT}
              v_fma_f32 v{pW+4}, v{pT+1}, v{pT+1}, v{pW+4}
              v_mul_f32 v{pL}, v{pW}, v{pW+2}
              v_mul_f32 v{pL+1}, v{pW}, v{pW+3}
              v_rcp_f32 v{pW+4}, v{pW+4}
              v_add_f32 v{pW+5}, -1.0, v{pL}
              v_add_f32 v{pW+4}, v{pW+4}, v{pW+4}
              v_mul_f32 v{pC2}, v{pW+5}, v{pT}
              v_mul_f32 v{pC2+1}, v{pL+1}, v{pT}
              v_fma_f32 v{pC2}, v{pL+1}, v{pT+1}, v{pC2}
              v_fma_f32 v{pC2+1}, -v{pW+5}, v{pT+1}, v{pC2+1}
              v_mul_f32 v{pC2}, v{pC2}, v{pW+4}
              v_mul_f32 v{pC2+1}, v{pC2+1}, v{pW+4}""")
        self.cmul(pQ, pC2, pL)
        for s in range(1, 8): self.cmul(pQ + 2*s, pQ + 2*s - 2, pL)
        self.cmul(pT, pL, pL); self.cmul(pT2, pT, pT); self.cmul(pL8, pT2, pT2); self.cmul(pL16, pL8, pL8); self.cmul(pL32, pL16, pL16)
        L64, L128 = pW, pW + 2
        self.cmul(L64, pL32, pL32); self.cmul(L128, L64, L64)
        p(f"s_mov_b32 s10, 0\ns_mov_b32 s11, -1")
        p(f"s_bitcmp1_b32 {sW}, 0\ns_cselect_b64 s[12:13], -1, 0\ns_bitcmp1_b32 {sW}, 1\ns_cselect_b64 s[14:15], -1, 0")
        for (dst, src, m) in ((pT, pL16, "s[10:11]"), (pT2, pL32, "s[12:13]"), (pW + 4, L64, "s[14:15]")):
            p(f"v_cndmask_b32 v{dst}, 1.0, v{src}, {m}\nv_cndmask_b32 v{dst+1}, 0, v{src+1}, {m}")
        self.cmul(pW + 6, pT, pT2); self.cmul(pT, pW + 6, pW + 4)
        self.cmul(pT2, pT, pL8)
        p(f"v_mov_b32 v{pPRE}, v{pT}\nv_mov_b32 v{pPRE+1}, v{pT2}\nv_mov_b32 v{pPIM}, v{pT+1}\nv_mov_b32 v{pPIM+1}, v{pT2+1}")
        self.cmul(pT2, pT, pT); self.cmul(pT, pT2, pT2); self.cmul(pT2, pT, pT); self.cmul(pV0, pT2, pT2)
        self.cmul(pV1, pV0, L128)

    def xn_load(self):
        p = self.p; t = vT
        p(f"""v_and_b32 v{t[0]}, 3, v1
              v_lshlrev_b32 v{t[0]}, 2, v{t[0]}
              s_lshl_b32 s34, {sRB}, 9
              s_lshl_b32 s3, {sW}, 4
              s_add_u32 s34, s34, s3
              s_add_u32 s34, s34, {FLAGS}""")
        self.poll([f"buffer_load_dword v{t[1]}, v{t[0]}, {RWS}, s34 offen sc1"], [f"v_cmp_ne_u32 vcc, {sTAG}, v{t[1]}"])
        self.stamp()
        p(f"s_lshl_b32 s34, {sRG}, 15")
        self.tx = []
        for ks in range(32):
            if ks and ks % 4 == 0: p("s_add_u32 s34, s34, 4096")
            off = f" offset:{(ks&3)*1024}" if ks & 3 else ""
            self.tx.append(p(f"buffer_load_dwordx4 {a(XA+4*ks,4)}, v{vL16}, {RWS}, s34 offen{off} sc1"))

    def ssm_mfma(self):
        p = self.p
        rd = {}
        def issue(ks):
            for c in range(2):
                slot = RING + ((2*ks + c) % 8) * 4
                rd[(ks, c)] = p(f"ds_read_b128 {v(slot,4)}, v{vRI[ks&3]} offset:{(ks>>2)*4096 + c*WSHI}")
        for ks in range(3): issue(ks)
        for ks in range(32):
            for c in range(2):
                slot = RING + ((2*ks + c) % 8) * 4
                p.wait(self.tx[ks], rd[(ks, c)])
                acc = v(ACC_RE if c == 0 else ACC_IM, 16)
                p(f"v_mfma_f32_32x32x16_bf16 {acc}, {a(XA+4*ks,4)}, {v(slot,4)}, {acc if ks else 0}")
            if ks + 3 < 32: issue(ks + 3)

    def ffn_mfma(self, i):
        p = self.p
        rd = {}
        base, boff = (vTF[0], 32768 * i) if i < 2 else (vTF[1], 0)
        def issue(ks):
            slot = RING + (ks % 8) * 4
            rd[ks] = [p(f"ds_read_b64_tr_b16 {v(slot+2*x,2)}, v{base} offset:{boff + ks*1024 + x*256}") for x in range(2)]
        for ks in range(4): issue(ks)
        acc = v(ACC_F[i], 16)
        for ks in range(32):
            slot = RING + (ks % 8) * 4
            p.wait(rd[ks])
            p(f"v_mfma_f32_32x32x16_bf16 {acc}, {v(slot,4)}, {a(XA+4*ks,4)}, {acc if ks else 0}")
            if ks + 4 < 32: issue(ks + 4)

    def ffn_store(self, i):
        p = self.p
        o = CVT + (i % 2) * 8
        for n in range(8):
            p(f"v_cvt_pk_bf16_f32 v{o+n}, v{ACC_F[i]+2*n}, v{ACC_F[i]+2*n+1}")
        for n in range(8):
            p(f"v_pk_max_i16 v{o+n}, v{o+n}, 0")
        p(f"s_mul_i32 s34, {sRG}, {HRG}\ns_lshl_b32 s3, s{4+i}, 11\ns_add_u32 s34, s34, s3\ns_add_u32 s34, s34, {HOFF}")
        self.tH += [p(f"buffer_store_dwordx4 {v(o,4)}, v{vL16}, {RWS}, s34 offen sc1"),
                    p(f"buffer_store_dwordx4 {v(o+4,4)}, v{vL16}, {RWS}, s34 offen offset:1024 sc1")]

    def scan1(self):
        p = self.p; t = vT
        RE = lambda s: P(ACC_RE + 2*s); IM = lambda s: P(ACC_IM + 2*s)
        for s in range(1, 8):
            p(f"v_pk_fma_f32 {RE(s)}, {P(pL)}, {RE(s-1)}, {RE(s)} op_sel_hi:[0,1,1]")
            p(f"v_pk_fma_f32 {IM(s)}, {P(pL)}, {IM(s-1)}, {IM(s)} op_sel_hi:[0,1,1]")
            p(f"v_pk_fma_f32 {RE(s)}, {P(pL)}, {IM(s-1)}, {RE(s)} op_sel:[1,0,0] op_sel_hi:[1,1,1] neg_lo:[1,0,0] neg_hi:[1,0,0]")
            p(f"v_pk_fma_f32 {IM(s)}, {P(pL)}, {RE(s-1)}, {IM(s)} op_sel:[1,0,0] op_sel_hi:[1,1,1]")
        aAr, aAi, aBr, aBi = ACC_RE + 14, ACC_IM + 14, ACC_RE + 15, ACC_IM + 15
        p(f"""v_fma_f32 v{pT}, v{pL8}, v{aAr}, v{aBr}
              v_fma_f32 v{pT+1}, v{pL8}, v{aAi}, v{aBi}
              v_fma_f32 v{pT}, -v{pL8+1}, v{aAi}, v{pT}
              v_fma_f32 v{pT+1}, v{pL8+1}, v{aAr}, v{pT+1}
              v_mov_b32 v{pT2}, v{pT}
              v_mov_b32 v{pT2+1}, v{pT+1}
              v_permlane32_swap_b32 v{pT}, v{pT2}
              v_permlane32_swap_b32 v{pT+1}, v{pT2+1}""")
        self.cfma(pW, pL16, pT, pT2)
        p(f"""v_and_b32 v{t[0]}, 31, v1
              v_lshlrev_b32 v{t[0]}, 3, v{t[0]}
              v_add_u32 v{t[0]}, {SCR+1024}, v{t[0]}
              s_lshl_b32 s3, {sW}, 8
              v_add_u32 v{t[1]}, s3, v{t[0]}""")
        w = p(f"ds_write_b64 v{t[1]}, {P(pW)}")
        p.wait(w); p("s_barrier")
        r0 = p(f"ds_read2_b64 v[{pW}:{pW+3}], v{t[0]} offset0:0 offset1:32")
        r1 = p(f"ds_read2_b64 v[{pW+4}:{pW+7}], v{t[0]} offset0:64 offset1:96")
        p(f"""s_lshl_b32 s34, {sRB}, 4
              s_add_u32 s34, s34, {sCG}
              s_lshl_b32 s34, s34, 9
              s_add_u32 s34, s34, {AGG}""")
        p.wait(r0, r1)
        c2, c3, A = pKRE, pKIM, pS
        self.cfma(c2, pL32, pW, pW + 2); self.cfma(c3, pL32, c2, pW + 4); self.cfma(A, pL32, c3, pW + 6)
        p(f"""v_mov_b32 v{LBK}, v{A}
              v_mov_b32 v{LBK+1}, {sTAG}
              v_mov_b32 v{LBK+2}, v{A+1}
              v_mov_b32 v{LBK+3}, {sTAG}""")
        p(f"s_lshl_b32 s3, {sW}, 3\ns_lshl_b64 exec, 0xff, s3")
        self.tagg = p(f"buffer_store_dwordx4 v[{LBK}:{LBK+3}], v{vL16}, {RWS}, s34 offen sc1")
        p("s_mov_b64 exec, -1")
        for e in range(2):
            p(f"""v_cndmask_b32 v{pW+2+e}, 0, v{pW+e}, s[12:13]
                  v_cndmask_b32 v{pW+4+e}, v{c2+e}, v{c3+e}, s[12:13]
                  v_cndmask_b32 v{pW+e}, v{pW+2+e}, v{pW+4+e}, s[14:15]""")
        self.cfma(pW + 2, pL16, pW, pT)
        p(f"v_cndmask_b32 v{pCRE}, v{pW}, v{pW+2}, s[10:11]\nv_cndmask_b32 v{pCIM}, v{pW+1}, v{pW+3}, s[10:11]")
        p(f"""v_fma_f32 v{pCRE+1}, v{pL8}, v{pCRE}, v{aAr}
              v_fma_f32 v{pCIM+1}, v{pL8}, v{pCIM}, v{aAi}
              v_fma_f32 v{pCRE+1}, -v{pL8+1}, v{pCIM}, v{pCRE+1}
              v_fma_f32 v{pCIM+1}, v{pL8+1}, v{pCRE}, v{pCIM+1}""")

    def shadow(self):
        p = self.p
        RE = lambda s: P(ACC_RE + 2*s); IM = lambda s: P(ACC_IM + 2*s); G = lambda s: P(GRE + 2*s)
        for s in range(8):
            p(f"v_pk_mul_f32 {G(s)}, {P(pC2)}, {RE(s)} op_sel_hi:[0,1]")
            p(f"v_pk_fma_f32 {G(s)}, {P(pC2)}, {IM(s)}, {G(s)} op_sel:[1,0,0] op_sel_hi:[1,1,1] neg_lo:[1,0,0] neg_hi:[1,0,0]")
            p(f"v_pk_mul_f32 {IM(s)}, {P(pC2)}, {IM(s)} op_sel_hi:[0,1] neg_lo:[1,0] neg_hi:[1,0]")
            p(f"v_pk_fma_f32 {IM(s)}, {P(pC2)}, {RE(s)}, {IM(s)} op_sel:[1,0,0] op_sel_hi:[1,1,1] neg_lo:[1,0,0] neg_hi:[1,0,0]")

    def lookback_issue(self):
        p = self.p; t = vT
        p(f"""v_lshrrev_b32 v{t[2]}, 5, v1
              v_lshlrev_b32 v{t[2]}, 1, v{t[2]}
              s_lshl_b32 s3, {sW}, 2
              s_sub_u32 s3, {sRB}, s3
              s_sub_u32 s3, s3, 1
              v_sub_u32 v{t[2]}, s3, v{t[2]}
              v_and_b32 v{t[3]}, 31, v1
              v_lshlrev_b32 v{t[3]}, 4, v{t[3]}
              v_cmp_le_i32 s[16:17], 0, v{t[2]}
              v_cmp_le_i32 s[18:19], 1, v{t[2]}
              v_lshl_add_u32 v{t[3]}, v{t[2]}, 13, v{t[3]}
              v_mov_b32 v{t[2]}, 0x7ff00000
              v_add_u32 v{t[5]}, -8192, v{t[3]}
              v_cndmask_b32 v{t[4]}, v{t[2]}, v{t[3]}, s[16:17]
              v_cndmask_b32 v{t[5]}, v{t[2]}, v{t[5]}, s[18:19]
              s_lshl_b32 s9, {sCG}, 9
              s_add_u32 s9, s9, {AGG}""")
        self.lb_loads = [f"buffer_load_dwordx4 v[{LBK}:{LBK+3}], v{t[4]}, {RWS}, s9 offen sc1",
                         f"buffer_load_dwordx4 v[{LBK+4}:{LBK+7}], v{t[5]}, {RWS}, s9 offen sc1"]
        p.wait(self.tagg)
        self.tlb = [p(l) for l in self.lb_loads]

    def lookback_finish(self, extra_wait=()):
        p = self.p; t = vT
        chk = [f"v_cmp_ne_u32 s[20:21], {sTAG}, v{LBK+1}", f"v_cmp_ne_u32 s[22:23], {sTAG}, v{LBK+3}",
               f"v_cmp_ne_u32 s[24:25], {sTAG}, v{LBK+5}", f"v_cmp_ne_u32 s[26:27], {sTAG}, v{LBK+7}",
               "s_or_b64 s[20:21], s[20:21], s[22:23]", "s_or_b64 s[24:25], s[24:25], s[26:27]",
               "s_and_b64 s[20:21], s[20:21], s[16:17]", "s_and_b64 s[24:25], s[24:25], s[18:19]",
               "s_or_b64 vcc, s[20:21], s[24:25]"]
        self.poll(self.lb_loads, chk, pre=self.tlb)
        p(f"v_mov_b32 v{LBK+1}, v{LBK+2}\nv_mov_b32 v{LBK+5}, v{LBK+6}")
        self.cmul(pT, pV0, LBK); self.cfma(pT2, pV1, LBK + 4, pT)
        p(f"""v_mov_b32 v{pT}, v{pT2}
              v_mov_b32 v{pT+1}, v{pT2+1}
              v_permlane32_swap_b32 v{pT}, v{pT2}
              v_permlane32_swap_b32 v{pT+1}, v{pT2+1}
              v_pk_add_f32 {P(pT)}, {P(pT)}, {P(pT2)}""")
        w = p(f"ds_write_b64 v{t[1]}, {P(pT)} offset:1024")
        p.wait(w, *extra_wait); p("s_barrier")
        r0 = p(f"ds_read2_b64 v[{pW}:{pW+3}], v{t[0]} offset0:128 offset1:160")
        r1 = p(f"ds_read2_b64 v[{pW+4}:{pW+7}], v{t[0]} offset0:192 offset1:224")
        p.wait(r0, r1)
        p(f"""v_pk_add_f32 {P(pW)}, {P(pW)}, {P(pW+2)}
              v_pk_add_f32 {P(pW+4)}, {P(pW+4)}, {P(pW+6)}
              v_pk_add_f32 {P(pS)}, {P(pW)}, {P(pW+4)}""")
        p(f"""v_pk_fma_f32 {P(pKRE)}, {P(pPRE)}, {P(pS)}, {P(pCRE)} op_sel_hi:[1,0,1]
              v_pk_fma_f32 {P(pKIM)}, {P(pPIM)}, {P(pS)}, {P(pCIM)} op_sel_hi:[1,0,1]
              v_pk_fma_f32 {P(pKRE)}, {P(pPIM)}, {P(pS)}, {P(pKRE)} op_sel:[0,1,0] op_sel_hi:[1,1,1] neg_lo:[1,0,0] neg_hi:[1,0,0]
              v_pk_fma_f32 {P(pKIM)}, {P(pPRE)}, {P(pS)}, {P(pKIM)} op_sel:[0,1,0] op_sel_hi:[1,1,1]""")

    def scan2(self):
        p = self.p; t = vT
        IM = lambda s: P(ACC_IM + 2*s); G = lambda s: P(GRE + 2*s); Q = lambda s: P(pQ + 2*s)
        for s in range(8):
            p(f"v_pk_fma_f32 {G(s)}, {Q(s)}, {P(pKRE)}, {G(s)} op_sel_hi:[0,1,1]")
            p(f"v_pk_fma_f32 {IM(s)}, {Q(s)}, {P(pKIM)}, {IM(s)} op_sel_hi:[0,1,1] neg_lo:[1,0,0] neg_hi:[1,0,0]")
            p(f"v_pk_fma_f32 {G(s)}, {Q(s)}, {P(pKIM)}, {G(s)} op_sel:[1,0,0] op_sel_hi:[1,1,1] neg_lo:[1,0,0] neg_hi:[1,0,0]")
            p(f"v_pk_fma_f32 {IM(s)}, {Q(s)}, {P(pKRE)}, {IM(s)} op_sel:[1,0,0] op_sel_hi:[1,1,1] neg_lo:[1,0,0] neg_hi:[1,0,0]")
        O = ACC_RE
        ws = []
        for c, src in enumerate((GRE, ACC_IM)):
            for n in range(8): p(f"v_cvt_pk_bf16_f32 v{O+8*c+n}, v{src+2*n}, v{src+2*n+1}")
        for q in range(4):
            if q: p(f"v_xor_b32 v{vHW+1}, {16*q}, v{vHW}")
            for c in range(2):
                ws.append(p(f"ds_write_b64 v{vHW + (1 if q else 0)}, {P(O+8*c+2*q)} offset:{2048*c}"))
        p.wait(ws)
        rs = []
        for c in range(2):
            for j in range(2):
                for x in range(2):
                    rs.append(p(f"ds_read_b64_tr_b16 {P(GRE+8*c+4*j+2*x)}, v{vHR+x} offset:{2048*c+1024*j}"))
        p(f"s_mul_i32 s34, {sRG}, {HRG}\ns_lshl_b32 s3, {sCG}, 11\ns_add_u32 s34, s34, s3\ns_add_u32 s34, s34, {HOFF+86*1024}\ns_add_u32 s35, s34, 32768")
        for c in range(2):
            for j in range(2):
                p.wait(rs[4*c+2*j: 4*c+2*j+2])
                self.tH.append(p(f"buffer_store_dwordx4 {v(GRE+8*c+4*j,4)}, v{vL16}, {RWS}, s{34+c} offen offset:{1024*j} sc1"))

    def c_prefetch(self):
        p = self.p
        for q in range(4): p(f"v_add_u32 v{vRC[q]}, s8, v{vRI[q]}")
        p(f"s_lshr_b32 s28, {sCG}, 1\ns_lshl_b32 s28, s28, 16\ns_and_b32 s3, {sW}, 1\ns_lshl_b32 s3, s3, 9\ns_add_u32 s28, s28, s3")
        units = [(b, dh) for b in range(4) for dh in range(2)]
        tk = {}; rd = {}
        def dma(u):
            b, dh = units[u]
            p(f"s_add_u32 s34, s28, {dh*32768 + b*128}")
            tk[u] = self.dma4(vI, RC, "s34", f"s_add_u32 m0, s8, {WSHI + (u&1)*4096}")
        dma(0); dma(1)
        for u in range(8):
            b, dh = units[u]
            p.wait(tk[u])
            rd[u] = [p(f"ds_read_b128 {a(CA + ((4*b+q)*2+dh)*4, 4)}, v{vRC[q]} offset:{WSHI + (u&1)*4096}") for q in range(4)]
            if u + 2 < 8:
                p.wait(rd[u]); dma(u + 2)
        p.wait(rd[6], rd[7])

    def w2_home(self, n):
        if n < 4: return 0, WSHI + n*2048, "s8", WSHI + n*2048
        if n < 8: return 1, (n-4)*2048, "s8", F0A + (n-4)*2048
        if n < 12: return 1, 32768 + (n-8)*2048, "s8", F1A + (n-8)*2048
        if n < 16: return 0, (n-12)*2048, "s8", WSLO + (n-12)*2048
        if n < 19: return 2, (n-16)*2048, "s7", (n-16)*2048
        return 0, WSHI + (n-19)*2048, "s8", WSHI + (n-19)*2048
    def w2_dma(self, n0, cnt, p=None):
        p = p or self.p
        _, _, sb, c = self.w2_home(n0)
        p(f"s_add_u32 s34, s29, {n0*16384}")
        tk = self.dma4(vW, RW2, "s34", f"s_add_u32 m0, {sb}, {c}", n=2*cnt, p=p)
        for i in range(cnt): self.tW2[n0 + i] = tk[2*i: 2*i+2]
    def w2_setup(self):
        p = self.p
        p(f"""s_mul_i32 s30, {sW}, 21
              s_cmp_lg_u32 {sW}, 0
              s_addc_u32 s30, s30, 0
              s_lshl_b32 s29, s30, 14
              s_lshr_b32 s3, {sCG}, 1
              s_lshl_b32 s3, s3, 7
              s_add_u32 s29, s29, s3""")
        self.tW2 = {}

    def phase2(self):
        p = self.p; t = vT
        ACC = lambda dh, rs: v(16 + (dh*2 + rs)*16, 16)
        p(f"""s_and_b32 s31, {sCG}, 1
              s_lshl_b32 s31, s31, 1
              s_lshl_b32 s3, {sRB}, 2
              s_add_u32 s31, s31, s3
              s_mul_i32 s20, s31, {HRG}
              s_add_u32 s20, s20, {HOFF}
              s_lshl_b32 s21, s30, 10
              s_add_u32 s21, s21, s20
              s_lshl_b32 s22, {sW}, 14
              s_add_u32 s22, s22, s20
              s_add_u32 s22, s22, {86*1024}""")
        p(f"""v_lshrrev_b32 v{t[2]}, 4, v1
              v_and_b32 v{t[3]}, 15, v1
              v_and_b32 v{t[4]}, 1, v{t[2]}
              v_lshrrev_b32 v{t[5]}, 1, v{t[2]}
              v_lshl_add_u32 v{t[4]}, v{t[4]}, 3, v{t[5]}
              v_lshlrev_b32 v{t[4]}, 11, v{t[4]}
              v_lshl_add_u32 v{t[6]}, v{t[3]}, 4, v{t[4]}
              v_and_b32 v{t[5]}, 1, v1
              v_bfe_u32 v{t[7]}, v1, 1, 3
              v_lshl_add_u32 v{t[5]}, v{t[5]}, 3, v{t[7]}
              v_lshl_add_u32 v{t[7]}, v{t[5]}, 4, v{t[4]}""")
        p(f"""s_lshr_b32 s3, {sW}, 1
              s_add_u32 s3, s3, s31
              s_lshl_b32 s3, s3, 5
              s_and_b32 s23, {sW}, 1
              s_lshl_b32 s23, s23, 2
              s_add_u32 s23, s23, s3
              s_lshl_b32 s23, s23, 11
              s_lshr_b32 s3, {sCG}, 1
              s_lshl_b32 s3, s3, 8
              s_add_u32 s23, s23, s3""")
        p(f"""v_and_b32 v{t[0]}, 15, v1
              v_lshlrev_b32 v{t[0]}, 2, v{t[0]}
              s_lshl_b32 s34, {sRB}, 9
              s_add_u32 s34, s34, {FLAGS+128}""")
        self.poll([f"buffer_load_dword v{t[1]}, v{t[0]}, {RWS}, s34 offen sc1"], [f"v_cmp_ne_u32 vcc, {sTAG}, v{t[1]}"])
        self.stamp()
        NS = 38; DEPTH = self.opt.get("hdepth", 12)
        hl = {}
        def hload(n):
            sreg, k = ("s21", n) if n < 22 else ("s22", n - 22)
            if k and k % 4 == 0: p(f"s_add_u32 {sreg}, {sreg}, 4096")
            off = f" offset:{(k&3)*1024}" if k & 3 else ""
            r = XA + (n % 16) * 8
            hl[n] = [p(f"buffer_load_dwordx4 {a(r,4)}, v{vL16}, {RWS}, {sreg} offen{off} sc1"),
                     p(f"buffer_load_dwordx4 {a(r+4,4)}, v{vL16B}, {RWS}, {sreg} offen{off} sc1")]
        for n in range(DEPTH): hload(n)
        NOFF = [0, 32768, 4096, 36864]
        tb = []
        for n in range(4):
            p(f"s_add_u32 s34, s23, {BASE + NOFF[n]}")
            tb.append(p(f"buffer_load_dwordx4 {v(GRE+4*n,4)}, v{t[7]}, {RWS}, s34 offen sc1"))
        rd = {}
        def wread(n):
            bs, off, _, _ = self.w2_home(n)
            p.wait(self.tW2[n])
            slot = RING + (n % 4) * 8
            rd[n] = [p(f"ds_read_b64_tr_b16 {v(slot+4*j+2*x,2)}, v{vT2[bs][j]} offset:{off + x*512}") for j in range(2) for x in range(2)]
        wread(0); wread(1)
        for n in range(NS):
            sk = None
            if n == 21:
                sk = p.label("skip"); p(f"s_sub_u32 s3, {sW}, 1\ns_cmp_lt_u32 s3, 2")
            r = XA + (n % 16) * 8
            p.wait(hl[n])
            if n < 22: p.wait(rd[n])
            if sk: p(f"s_cbranch_scc1 {sk}")
            for dh in range(2):
                for rs in range(2):
                    A = v(RING + (n % 4)*8 + 4*dh, 4) if n < 22 else a(CA + ((n-22)*2 + dh)*4, 4)
                    p(f"v_mfma_f32_32x32x16_bf16 {ACC(dh,rs)}, {A}, {a(r+4*rs,4)}, {ACC(dh,rs) if n else 0}")
            if sk: p(f"{sk}:")
            if n == 3:
                self.w2_dma(19, 2); self.w2_dma(21, 1)
            if n + 2 < 22: wread(n + 2)
            if n + DEPTH < NS: hload(n + DEPTH)
        self.stamp()
        p(f"""v_and_b32 v{t[0]}, 31, v1
              v_lshrrev_b32 v{t[1]}, 5, v1
              v_and_b32 v{t[5]}, 7, v1
              v_xor_b32 v{t[1]}, v{t[1]}, v{t[5]}
              v_lshlrev_b32 v{t[0]}, 8, v{t[0]}
              v_lshl_add_u32 v{t[0]}, v{t[1]}, 4, v{t[0]}
              v_add_u32 v{t[0]}, s8, v{t[0]}""")
        ws = []
        for q in range(4):
            if q: p(f"v_xor_b32 v{t[1]}, {32*q}, v{t[0]}")
            base = t[1] if q else t[0]
            p(f"v_add_u32 v{t[8]}, {F0A}, v{base}")
            for dh in range(2):
                ws.append(p(f"ds_write_b128 v{base}, {v(16+(dh*2+0)*16+4*q,4)} offset:{WSHI + dh*128}"))
                ws.append(p(f"ds_write_b128 v{t[8]}, {v(16+(dh*2+1)*16+4*q,4)} offset:{dh*128}"))
        p(f"""v_xor_b32 v{t[3]}, v{t[3]}, v{t[2]}
              v_lshlrev_b32 v{t[2]}, 8, v{t[2]}
              v_lshl_add_u32 v{t[2]}, v{t[3]}, 4, v{t[2]}
              s_lshr_b32 s3, {sW}, 1
              s_lshl_b32 s3, s3, 15
              s_and_b32 s34, {sW}, 1
              s_lshl_b32 s34, s34, 12
              s_add_u32 s3, s3, s34
              s_add_u32 s3, s3, {WSHI}
              v_add_u32 v{t[2]}, s3, v{t[2]}
              v_xor_b32 v{t[3]}, 64, v{t[2]}""")
        p.wait(ws); p("s_barrier")
        rs_ = {}
        for n in range(4):
            rs_[n] = [p(f"ds_read_b128 {v(16 + n*16 + 4*w, 4)}, v{t[3] if n & 1 else t[2]} offset:{w*8192 + n*1024}") for w in range(4)]
        for n in range(4):
            p.wait(rs_[n], tb[n])
            b = 16 + n*16
            for e in (0, 2):
                p(f"""v_pk_add_f32 {P(b+e)}, {P(b+e)}, {P(b+4+e)}
                      v_pk_add_f32 {P(b+8+e)}, {P(b+8+e)}, {P(b+12+e)}
                      v_pk_add_f32 {P(b+e)}, {P(b+e)}, {P(GRE+4*n+e)}
                      v_pk_add_f32 {P(b+e)}, {P(b+e)}, {P(b+8+e)}""")
            p(f"s_add_u32 s34, s23, {NOFF[n]}")
            p(f"buffer_store_dwordx4 {v(b,4)}, v{t[6]}, {ROUT}, s34 offen")

    def finish(self):
        p = self.p
        sk = p.label("ng")
        p(f"s_lshl_b32 s3, {sRB}, 4\ns_add_u32 s3, s3, {sCG}\ns_lshl_b32 s3, s3, 2\ns_add_u32 s3, s3, {sW}\ns_cmp_lg_u32 s3, {15*64}\ns_cbranch_scc1 {sk}")
        p.raw(f"""v_mov_b32 v14, {sTAG}
                  v_mov_b32 v15, {GOFF}
                  s_mov_b64 exec, 1
                  buffer_store_dword v14, v15, {RWS}, 0 offen sc1
                  s_mov_b64 exec, -1""")
        p(f"{sk}:")
        if self.stamps:
            p("s_waitcnt vmcnt(0)"); self.stamp_last = True
            p(f"s_memtime s[34:35]\ns_waitcnt lgkmcnt(0)")
            p(f"s_lshl_b32 s3, s3, 6\ns_add_u32 s3, s3, {TS}\nv_mov_b32 v15, 0\ns_mov_b64 exec, 1")
            regs = [80] + [82 + 2*i for i in range(self.nst)] + [34]
            for i, r in enumerate(regs):
                p(f"v_mov_b32 v14, s{r}\nbuffer_store_dword v14, v15, {RWS}, s3 offen offset:{4*i}")
        p("L_END:\ns_endpgm")

    def build(self):
        p = self.p
        self.prologue(); self.phase0(); self.addrs(); self.params(); self.xn_load()
        self.ssm_mfma(); self.stamp()
        self.scan1()
        self.fdma(2, WSLO)
        self.tH = []
        self.lookback_issue()
        self.shadow()
        self.ffn_mfma(0); self.ffn_store(0)
        self.ffn_mfma(1); self.ffn_store(1)
        self.lookback_finish(extra_wait=self.tF[2]); self.stamp()
        self.scan2()
        self.ffn_mfma(2); p.wait(self.tH[0:2]); self.ffn_store(2)
        self.c_prefetch()
        p.wait(self.tH, self.tbase); p("s_barrier"); self.flag(1)
        self.w2_setup()
        for n0 in range(0, 18, 2): self.w2_dma(n0, 2)
        self.w2_dma(18, 1)
        self.phase2(); self.finish()
        body = finalize(p.items, verbose=True)
        hdr = open(f"cdna_kernels/{NAME}.s.ref").read().split("; Override")[0]
        k = self.kname
        launch = "; @launch grid=(256,1,1) block=(256,1,1) lds=163840" if k == NAME + "_kernel" else f"; @launch kernel={k} grid=(256,1,1) block=(256,1,1) lds=163840"
        return (hdr + launch + "\n" + '.amdgcn_target "amdgcn-amd-amdhsa--gfx950"\n.text\n' + f".globl {k}\n.p2align 8\n.type {k},@function\n{k}:\n"
                + "\n".join(body) + "\n" + f""".section .rodata,"a"
.p2align 6
.amdhsa_kernel {k}
  .amdhsa_next_free_vgpr 512
  .amdhsa_next_free_sgpr 102
  .amdhsa_accum_offset 256
  .amdhsa_group_segment_fixed_size 0
  .amdhsa_kernarg_size 120
  .amdhsa_user_sgpr_count 2
  .amdhsa_user_sgpr_kernarg_segment_ptr 1
  .amdhsa_system_sgpr_workgroup_id_x 1
.end_amdhsa_kernel
""")

if __name__ == "__main__":
    out = sys.argv[1] if len(sys.argv) > 1 else f"cdna_kernels/{NAME}.s"
    open(out, "w").write(Gen().build())
```

```python
import sys, math
sys.path.insert(0, "dev")
from asmlib import *

NAME = "parallel_sum__ssm_conv_s5__dense_activation_relu__prompt"
XN, BASE, HOFF, AGG, FLAGS, GOFF, TS, WS_SIZE = 0, 0x200000, 0x600000, 0xF60000, 0xF80000, 0xF90000, 0xFA0000, 0x1000000
HRG = 150 * 1024
WSLO, WSHI, F0A, F1A, PRIV, SCR = 0, 32768, 65536, 98304, 131072, 155648
PSTR = 6144
RBRE, RBIM, RC, RW1, RW2, RWS, ROUT = "s[36:39]", "s[40:43]", "s[44:47]", "s[48:51]", "s[52:55]", "s[56:59]", "s[60:63]"
sRB, sCG, sW, sTAG, sBUD, sRG = "s64", "s65", "s66", "s67", "s68", "s69"
vL = "v1"
vI = [2, 3, 4, 5]; vF = [6, 7, 8, 9]; vW = [10, 11, 12, 13]
ACC_RE, ACC_IM, ACC_F = 16, 32, [48, 64, 80]
RING = 96
vRI = [128, 129, 130, 131]; vTF = [132, 133]; vT2 = [[134, 135], [136, 137], [138, 139]]
vL16 = 140; vRC = [141, 142, 143, 144]; vL16B = 145
pL, pL8, pL16, pL32, pC2, pQ, pPRE, pPIM, pV0, pV1 = 146, 148, 150, 152, 154, 156, 172, 174, 176, 178
pT, pT2, pW, pCRE, pCIM, pKRE, pKIM, pS, GRE, LBK, CVT = 180, 182, 184, 192, 194, 196, 198, 200, 202, 218, 226
vHW, vHR = 242, 244
vT = [246, 247, 248, 249, 250, 251, 252, 253, 254, 255]
XA, CA = 0, 128

def v(n, c=1): return f"v{n}" if c == 1 else f"v[{n}:{n+c-1}]"
def a(n, c=1): return f"a{n}" if c == 1 else f"a[{n}:{n+c-1}]"
def P(n): return f"v[{n}:{n+1}]"

class Gen:
    def __init__(self, stamps=False, kname=None, **opt):
        self.p = Prog(); self.stamps = stamps; self.nst = 0; self.opt = opt
        self.kname = kname or NAME + "_kernel"
    def stamp(self):
        if self.stamps and self.nst < 10:
            self.p(f"s_memtime s[{82+2*self.nst}:{83+2*self.nst}]"); self.nst += 1
    def cmul(self, z, x, y):
        assert z != x and z != y
        self.p(f"v_pk_mul_f32 {P(z)}, {P(x)}, {P(y)} op_sel:[0,0] op_sel_hi:[0,1]")
        self.p(f"v_pk_fma_f32 {P(z)}, {P(x)}, {P(y)}, {P(z)} op_sel:[1,1,0] op_sel_hi:[1,0,1] neg_lo:[1,0,0]")
    def cfma(self, z, x, y, c):
        assert z != x and z != y
        self.p(f"v_pk_fma_f32 {P(z)}, {P(x)}, {P(y)}, {P(c)} op_sel:[0,0,0] op_sel_hi:[0,1,1]")
        self.p(f"v_pk_fma_f32 {P(z)}, {P(x)}, {P(y)}, {P(z)} op_sel:[1,1,0] op_sel_hi:[1,0,1] neg_lo:[1,0,0]")
    def bf16r(self, d, s):
        self.p(f"v_cvt_pk_bf16_f32 v{d}, v{s}, v{s}")
        self.p(f"v_and_b32 v{d}, 0xffff0000, v{d}")
    def srd(self, r, lo, hi, n):
        b = int(r[2:r.index(":")])
        self.p(f"s_mov_b32 s{b}, {lo}\ns_mov_b32 s{b+1}, {hi}\ns_mov_b32 s{b+2}, {n}\ns_mov_b32 s{b+3}, 0x20000")
    def dma4(self, vregs, srd, soff, m0expr, n=4, p=None):
        p = p or self.p
        p(m0expr)
        toks = []
        for g in range(n):
            off = f" offset:{g*1024}" if g else ""
            toks.append(p(f"buffer_load_dwordx4 v{vregs[g]}, {srd}, {soff} offen{off} lds"))
        return toks
    def poll(self, loads, checks, pre=None):
        p = self.p
        toks = pre if pre is not None else [p(l) for l in loads]
        p.wait(toks)
        for c in checks: p(c)
        d, r = p.label("done"), p.label("retry")
        p(f"s_cbranch_vccz {d}")
        p.raw(f"{r}:\ns_cmp_eq_u32 {sBUD}, 0\ns_cbranch_scc1 {d}\ns_sub_u32 {sBUD}, {sBUD}, 1\n" + "\n".join(loads) + "\ns_waitcnt vmcnt(0)\n" + "\n".join(checks) + f"\ns_cbranch_vccnz {r}")
        p(f"{d}:")

    def prologue(self):
        p = self.p
        p("s_cmp_ge_u32 s2, 0x100\ns_cbranch_scc1 L_END")
        p("s_load_dwordx16 s[4:19], s[0:1], 0\ns_load_dwordx8 s[20:27], s[0:1], 64\ns_load_dwordx4 s[28:31], s[0:1], 96\ns_load_dwordx2 s[32:33], s[0:1], 112")
        if self.stamps: p("s_memrealtime s[80:81]"); self.stamp()
        p("v_and_b32 v1, 63, v0\nv_lshrrev_b32 v14, 6, v0")
        p(f"s_and_b32 s3, s2, 7\ns_lshr_b32 s34, s2, 3")
        p(f"v_readfirstlane_b32 {sW}, v14")
        p(f"""s_lshr_b32 {sRB}, s3, 1
              s_lshl_b32 {sRB}, {sRB}, 2
              s_lshr_b32 s35, s34, 3
              s_add_u32 {sRB}, {sRB}, s35
              s_and_b32 {sCG}, s3, 1
              s_lshl_b32 {sCG}, {sCG}, 3
              s_and_b32 s35, s34, 7
              s_add_u32 {sCG}, {sCG}, s35
              s_lshl_b32 {sRG}, {sRB}, 2
              s_add_u32 {sRG}, {sRG}, {sW}
              s_mov_b32 {sBUD}, 0x10000""")
        t = vT
        p(f"""v_lshrrev_b32 v14, 3, v1
              v_and_b32 v15, 7, v1
              v_lshrrev_b32 v{t[0]}, 5, v1
              v_lshlrev_b32 v{t[0]}, 4, v{t[0]}
              v_and_b32 v{t[1]}, 8, v1
              v_bfe_u32 v{t[2]}, v1, 4, 1
              v_or3_b32 v{t[0]}, v{t[0]}, v{t[1]}, v{t[2]}""")
        p(f"""s_lshr_b32 s72, {sCG}, 2
              s_lshl_b32 s3, {sRB}, 2
              s_add_u32 s72, s72, s3
              s_and_b32 s71, {sCG}, 3
              s_lshl_b32 s70, s72, 5
              s_lshl_b32 s3, s71, 1
              s_add_u32 s70, s70, s3
              s_lshl_b32 s73, {sW}, 8""")
        p(f"""v_add_u32 v{t[3]}, s70, v{t[0]}
              v_lshlrev_b32 v{t[3]}, 10, v{t[3]}
              v_lshl_add_u32 v{t[4]}, v15, 4, s73
              v_add_u32 v{t[5]}, v{t[3]}, v{t[4]}""")
        p(f"""v_and_b32 v{t[6]}, 31, v1
              s_lshl_b32 s3, {sCG}, 6
              v_lshl_add_u32 v{t[7]}, v{t[6]}, 1, s3""")
        p(f"""v_lshrrev_b32 v{t[8]}, 4, v1
              v_xor_b32 v{t[8]}, v{t[8]}, v15
              v_lshlrev_b32 v{t[8]}, 4, v{t[8]}
              v_lshl_add_u32 v{vI[0]}, v14, 10, v{t[8]}
              v_xor_b32 v{vI[1]}, 64, v{vI[0]}
              v_add_u32 v{vI[2]}, {7168*2}, v{vI[0]}
              v_add_u32 v{vI[3]}, {7168*3}, v{vI[1]}
              v_add_u32 v{vI[1]}, 7168, v{vI[1]}""")
        p("s_waitcnt lgkmcnt(0)")
        self.stamp()
        self.tx = [p(f"global_load_dwordx4 v[16:19], v{t[5]}, s[4:5]"),
                   p(f"global_load_dwordx4 v[20:23], v{t[5]}, s[4:5] offset:128"),
                   p(f"global_load_ushort v48, v{t[3]}, s[4:5]")]
        p(f"s_add_u32 s34, s32, {GOFF}\ns_addc_u32 s35, s33, 0\ns_load_dword {sTAG}, s[34:35], 0")
        self.srd(RBRE, "s10", "s11", 524288); self.srd(RBIM, "s12", "s13", 524288)
        p(f"s_lshl_b32 s74, {sCG}, 15\ns_add_u32 s74, s74, s73\ns_add_u32 s75, s74, 128\ns_lshl_b32 s76, {sW}, 13")
        self.tws = []
        self.tws += self.dma4(vI, RBRE, "s74", "s_mov_b32 m0, s76")
        self.tws += self.dma4(vI, RBIM, "s74", f"s_add_u32 m0, s76, {WSHI}")
        self.tws += self.dma4(vI, RBRE, "s75", "s_add_u32 m0, s76, 4096")
        self.tws += self.dma4(vI, RBIM, "s75", f"s_add_u32 m0, s76, {WSHI+4096}")
        self.tdp = [p(f"global_load_dwordx4 v[24:27], v{t[4]}, s[20:21]"),
                    p(f"global_load_dwordx4 v[28:31], v{t[4]}, s[20:21] offset:128"),
                    p(f"global_load_ushort v{pT}, v{t[7]}, s[6:7]"),
                    p(f"global_load_ushort v{pT+1}, v{t[7]}, s[8:9]"),
                    p(f"global_load_ushort v{pT2}, v{t[7]}, s[18:19]")]
        self.srd(RW1, "s24", "s25", 512 * 2752); self.srd(RW2, "s26", "s27", 1376 * 1024)
        self.srd(RWS, "s32", "s33", WS_SIZE); self.srd(ROUT, "s28", "s29", 2048 * 512 * 4)
        p(f"s_cmp_ge_u32 {sW}, 2\ns_cselect_b32 s44, s16, s14\ns_cselect_b32 s45, s17, s15\ns_mov_b32 s46, 524288\ns_mov_b32 s47, 0x20000")
        p(f"""v_lshrrev_b32 v{t[8]}, 2, v1
              v_mul_u32_u24 v{t[8]}, 2752, v{t[8]}
              v_and_b32 v{t[9]}, 3, v1
              v_lshl_add_u32 v{vF[0]}, v{t[9]}, 4, v{t[8]}
              v_add_u32 v{vF[1]}, {43008}, v{vF[0]}
              v_add_u32 v{vF[2]}, {43008*2}, v{vF[0]}
              v_add_u32 v{vF[3]}, {43008*3}, v{vF[0]}""")
        p(f"""v_lshlrev_b32 v{t[1]}, 9, v15
              v_lshl_add_u32 v{t[1]}, v14, 4, v{t[1]}
              v_lshlrev_b32 v{t[2]}, 11, v{t[0]}
              v_lshl_add_u32 v{t[2]}, v15, 4, v{t[2]}""")
        p(f"""s_lshl_b32 s3, {sW}, 6
              s_add_u32 s3, s3, {SCR}
              v_lshl_add_u32 v{t[3]}, v14, 3, s3
              v_lshlrev_b32 v{t[4]}, 3, v14
              v_add_u32 v{t[4]}, {SCR}, v{t[4]}""")

    def phase0(self):
        p = self.p; t = vT
        F = 32
        p.wait(self.tx)
        self.stamp()
        p("v_lshlrev_b32 v48, 16, v48")
        for n in range(8):
            p(f"v_lshlrev_b32 v{F+2*n}, 16, v{16+n}\nv_and_b32 v{F+2*n+1}, 0xffff0000, v{16+n}")
        D = 50
        for n in range(8):
            p(f"v_pk_add_f32 {P(D+2*n)}, {P(F+2*n)}, {P(48)} op_sel_hi:[1,0] neg_lo:[0,1] neg_hi:[0,1]")
        p(f"v_pk_add_f32 {P(66)}, {P(D)}, {P(D+2)}\nv_pk_mul_f32 {P(68)}, {P(D)}, {P(D)}")
        p(f"v_pk_fma_f32 {P(68)}, {P(D+2)}, {P(D+2)}, {P(68)}")
        for n in range(2, 8):
            p(f"v_pk_add_f32 {P(66)}, {P(66)}, {P(D+2*n)}\nv_pk_fma_f32 {P(68)}, {P(D+2*n)}, {P(D+2*n)}, {P(68)}")
        p("v_add_f32 v70, v66, v67\nv_add_f32 v71, v68, v69")
        for m in ("quad_perm:[1,0,3,2]", "quad_perm:[2,3,0,1]", "row_half_mirror"):
            p(f"v_add_f32_dpp v70, v70, v70 {m} row_mask:0xf bank_mask:0xf\nv_add_f32_dpp v71, v71, v71 {m} row_mask:0xf bank_mask:0xf")
        w = p(f"ds_write_b64 v{t[3]}, v[70:71]")
        p.wait(w); p("s_barrier")
        r0 = p(f"ds_read2_b64 v[72:75], v{t[4]} offset0:0 offset1:8")
        r1 = p(f"ds_read2_b64 v[76:79], v{t[4]} offset0:16 offset1:24")
        p.wait(r0, r1)
        p(f"""v_pk_add_f32 v[72:73], v[72:73], v[74:75]
              v_pk_add_f32 v[76:77], v[76:77], v[78:79]
              v_pk_add_f32 v[72:73], v[72:73], v[76:77]
              v_mul_f32 v72, 0x3b000000, v72
              v_mul_f32 v73, 0x3b000000, v73
              v_fma_f32 v73, -v72, v72, v73
              v_add_f32 v72, v72, v48""")
        p("v_cvt_pk_bf16_f32 v74, v72, v73\nv_lshlrev_b32 v76, 16, v74\nv_and_b32 v75, 0xffff0000, v74")
        p("v_add_f32 v75, 0x3727c5ac, v75")
        self.bf16r(75, 75)
        p("v_sqrt_f32 v75, v75")
        self.bf16r(75, 75)
        p("v_rcp_f32 v77, v75")
        X = 80
        for n in range(8):
            p(f"v_pk_add_f32 {P(D+2*n)}, {P(F+2*n)}, {P(76)} op_sel_hi:[1,0] neg_lo:[0,1] neg_hi:[0,1]")
        for n in range(8):
            p(f"v_cvt_pk_bf16_f32 v{X+n}, v{D+2*n}, v{D+2*n+1}")
        for n in range(8):
            p(f"v_lshlrev_b32 v{D+2*n}, 16, v{X+n}\nv_and_b32 v{D+2*n+1}, 0xffff0000, v{X+n}")
        for n in range(8):
            p(f"v_pk_mul_f32 {P(D+2*n)}, {P(D+2*n)}, {P(76)} op_sel:[0,1] op_sel_hi:[1,1]")
        for n in range(8):
            p(f"v_cvt_pk_bf16_f32 v{X+n}, v{D+2*n}, v{D+2*n+1}")
        p(f"""s_lshl_b32 s77, s72, 15
              s_lshl_b32 s3, {sW}, 13
              s_add_u32 s77, s77, s3
              s_lshl_b32 s3, s71, 7
              s_add_u32 s77, s77, s3
              s_add_u32 s78, s77, 4096""")
        self.txn = [p(f"buffer_store_dwordx4 v[80:83], v{t[1]}, {RWS}, s77 offen sc1"),
                    p(f"buffer_store_dwordx4 v[84:87], v{t[1]}, {RWS}, s78 offen sc1")]
        self.stamp()
        p(f"""s_mul_i32 s79, {sCG}, 3
              s_lshl_b32 s3, {sCG}, 1
              s_add_u32 s3, s3, 11
              s_cmp_lt_u32 {sCG}, 11
              s_cselect_b32 s79, s79, s3
              s_cselect_b32 s3, 2, 1
              s_add_u32 s34, s79, s3""")
        p("s_mov_b32 s4, s79\ns_add_u32 s5, s79, 1\ns_mov_b32 s6, s34")
        self.tF = [[], [], []]
        self.fdma(0, F0A); self.fdma(1, F1A)
        p.wait(self.tdp[:2])
        for n in range(8):
            p(f"v_lshlrev_b32 v{D+2*n}, 16, v{X+n}\nv_and_b32 v{D+2*n+1}, 0xffff0000, v{X+n}")
            p(f"v_lshlrev_b32 v{88}, 16, v{24+n}\nv_and_b32 v{89}, 0xffff0000, v{24+n}")
            p(f"v_pk_mul_f32 {P(D+2*n)}, {P(D+2*n)}, {P(88)}")
            p(f"v_cvt_pk_bf16_f32 v90, v{D+2*n}, v{D+2*n+1}")
            p(f"v_lshlrev_b32 v{D+2*n}, 16, v90\nv_and_b32 v{D+2*n+1}, 0xffff0000, v90")
            p(f"v_pk_add_f32 {P(F+2*n)}, {P(F+2*n)}, {P(D+2*n)}")
        p(f"s_lshl_b32 s77, s70, 11\ns_lshl_b32 s3, {sW}, 9\ns_add_u32 s77, s77, s3\ns_add_u32 s77, s77, {BASE}")
        p.wait(self.txn, self.tws)
        p("s_waitcnt lgkmcnt(0)")
        p(f"s_mul_i32 {sTAG}, {sTAG}, 0x19660d\ns_add_u32 {sTAG}, {sTAG}, 0x3c6ef35f")
        p("s_barrier")
        self.flag(0)
        self.tbase = [p(f"buffer_store_dwordx4 v[{F+4*n}:{F+4*n+3}], v{t[2]}, {RWS}, s77 offen offset:{(n>>1)*256+(n&1)*128} sc1") for n in range(4)]
        self.stamp()

    def fdma(self, i, dst, p=None):
        p = p or self.p
        p(f"s_mul_i32 s34, {sW}, {128*2752}\ns_lshl_b32 s3, s{4+i}, 6\ns_add_u32 s34, s34, s3\ns_add_u32 s35, s34, {64*2752}\ns_lshl_b32 s3, {sW}, 13")
        self.tF[i] += self.dma4(vF, RW1, "s34", f"s_add_u32 m0, s3, {dst}", p=p)
        self.tF[i] += self.dma4(vF, RW1, "s35", f"s_add_u32 m0, s3, {dst+4096}", p=p)

    def flag(self, kind):
        p = self.p
        sk = p.label("nf")
        p(f"s_cmp_lg_u32 {sW}, 0\ns_cbranch_scc1 {sk}")
        p.raw(f"""s_lshl_b32 s3, {sRB}, 9
                  s_lshl_b32 s34, {sCG}, 2
                  s_add_u32 s3, s3, s34
                  s_add_u32 s3, s3, {FLAGS + kind*128}
                  v_mov_b32 v14, {sTAG}
                  v_mov_b32 v15, 0
                  s_mov_b64 exec, 1
                  buffer_store_dword v14, v15, {RWS}, s3 offen sc1
                  s_mov_b64 exec, -1""")
        p(f"{sk}:")

    def addrs(self):
        p = self.p; t = vT
        p(f"""v_and_b32 v{t[0]}, 31, v1
              v_lshrrev_b32 v{t[1]}, 5, v1
              v_bfe_u32 v{t[5]}, v1, 2, 2
              v_and_b32 v{t[3]}, 3, v1
              v_bfe_u32 v{t[4]}, v1, 4, 1
              v_bfe_u32 v{t[6]}, v1, 1, 3
              v_xor_b32 v{t[6]}, v{t[6]}, v{t[1]}""")
        p(f"""v_lshlrev_b32 v{vRI[0]}, 7, v{t[0]}
              v_lshl_add_u32 v{vRI[0]}, v{t[6]}, 4, v{vRI[0]}
              v_xor_b32 v{vRI[1]}, 32, v{vRI[0]}
              v_xor_b32 v{vRI[2]}, 64, v{vRI[0]}
              v_xor_b32 v{vRI[3]}, 96, v{vRI[0]}""")
        p(f"s_mul_i32 s7, {sW}, {PSTR}\ns_add_u32 s7, s7, {PRIV}\ns_lshl_b32 s8, {sW}, 13")
        p(f"""v_lshlrev_b32 v{vHW}, 6, v{t[0]}
              v_lshl_add_u32 v{vHW}, v{t[6]}, 3, v{vHW}
              v_add_u32 v{vHW}, s7, v{vHW}""")
        p(f"v_lshl_add_u32 v{t[7]}, v{t[1]}, 3, v{t[5]}")
        p(f"""v_and_b32 v{t[8]}, 1, v1
              v_bfe_u32 v{t[9]}, v1, 1, 1
              v_lshl_add_u32 v{t[8]}, v{t[8]}, 1, v{t[9]}
              v_lshlrev_b32 v{t[8]}, 3, v{t[8]}
              v_lshl_add_u32 v{t[8]}, v{t[4]}, 5, v{t[8]}
              v_lshl_add_u32 v{vTF[1]}, v{t[7]}, 6, v{t[8]}
              v_add_u32 v{vTF[0]}, {F0A}, v{vTF[1]}""")
        p(f"""v_lshlrev_b32 v{t[8]}, 3, v{t[3]}
              v_lshl_add_u32 v{t[8]}, v{t[4]}, 5, v{t[8]}
              v_bfe_u32 v{t[9]}, v1, 3, 1
              v_lshl_add_u32 v{t[8]}, v{t[9]}, 6, v{t[8]}
              v_lshl_add_u32 v{t[8]}, v{t[7]}, 7, v{t[8]}
              v_add_u32 v{vT2[0][0]}, s8, v{t[8]}
              v_add_u32 v{vT2[2][0]}, s7, v{t[8]}
              v_xor_b32 v{t[8]}, 64, v{t[8]}
              v_add_u32 v{vT2[0][1]}, s8, v{t[8]}
              v_add_u32 v{vT2[2][1]}, s7, v{t[8]}
              v_add_u32 v{vT2[1][0]}, 0x10000, v{vT2[0][0]}
              v_add_u32 v{vT2[1][1]}, 0x10000, v{vT2[0][1]}""")
        p(f"""v_lshl_add_u32 v{t[8]}, v{t[4]}, 2, v{t[3]}
              v_lshl_add_u32 v{t[9]}, v{t[1]}, 2, v{t[9]}
              v_xor_b32 v{t[8]}, v{t[8]}, v{t[9]}
              v_lshlrev_b32 v{t[8]}, 3, v{t[8]}
              v_lshl_add_u32 v{t[8]}, v{t[7]}, 6, v{t[8]}
              v_add_u32 v{vHR}, s7, v{t[8]}
              v_xor_b32 v{t[8]}, 16, v{t[8]}
              v_add_u32 v{t[8]}, 256, v{t[8]}
              v_add_u32 v{vHR+1}, s7, v{t[8]}""")
        p(f"v_lshlrev_b32 v{vL16}, 4, v1\nv_add_u32 v{vL16B}, {HRG}, v{vL16}")
        p(f"""v_lshrrev_b32 v{t[8]}, 3, v1
              v_and_b32 v{t[9]}, 7, v1
              v_lshlrev_b32 v{t[4]}, 2, v{t[4]}
              v_xor_b32 v{t[9]}, v{t[9]}, v{t[4]}
              v_lshlrev_b32 v{t[9]}, 4, v{t[9]}
              v_lshl_add_u32 v{vW[0]}, v{t[8]}, 10, v{t[9]}
              v_add_u32 v{vW[1]}, 7168, v{vW[0]}
              v_add_u32 v{vW[2]}, {7168*2}, v{vW[0]}
              v_add_u32 v{vW[3]}, {7168*3}, v{vW[0]}""")

    def params(self):
        p = self.p; t = vT
        p.wait(self.tdp)
        LOG2E = "0x3fb8aa3b"
        p(f"""v_lshlrev_b32 v{pT}, 16, v{pT}
              v_lshlrev_b32 v{pT+1}, 16, v{pT+1}
              v_lshlrev_b32 v{pT2}, 16, v{pT2}
              v_mul_f32 v{pT2}, {LOG2E}, v{pT2}
              v_exp_f32 v{pT2}, v{pT2}""")
        self.bf16r(pT2, pT2)
        p(f"""v_mul_f32 v{pW}, v{pT2}, v{pT}
              v_mul_f32 v{pW+1}, v{pT2}, v{pT+1}
              v_mul_f32 v{pW}, {LOG2E}, v{pW}
              v_mul_f32 v{pW+1}, 0.15915494, v{pW+1}
              v_exp_f32 v{pW}, v{pW}
              v_fract_f32 v{pW+1}, v{pW+1}
              v_cos_f32 v{pW+2}, v{pW+1}
              v_sin_f32 v{pW+3}, v{pW+1}
              v_mul_f32 v{pW+4}, v{pT}, v{pT}
              v_fma_f32 v{pW+4}, v{pT+1}, v{pT+1}, v{pW+4}
              v_mul_f32 v{pL}, v{pW}, v{pW+2}
              v_mul_f32 v{pL+1}, v{pW}, v{pW+3}
              v_rcp_f32 v{pW+4}, v{pW+4}
              v_add_f32 v{pW+5}, -1.0, v{pL}
              v_add_f32 v{pW+4}, v{pW+4}, v{pW+4}
              v_mul_f32 v{pC2}, v{pW+5}, v{pT}
              v_mul_f32 v{pC2+1}, v{pL+1}, v{pT}
              v_fma_f32 v{pC2}, v{pL+1}, v{pT+1}, v{pC2}
              v_fma_f32 v{pC2+1}, -v{pW+5}, v{pT+1}, v{pC2+1}
              v_mul_f32 v{pC2}, v{pC2}, v{pW+4}
              v_mul_f32 v{pC2+1}, v{pC2+1}, v{pW+4}""")
        self.cmul(pQ, pC2, pL)
        for s in range(1, 8): self.cmul(pQ + 2*s, pQ + 2*s - 2, pL)
        self.cmul(pT, pL, pL); self.cmul(pT2, pT, pT); self.cmul(pL8, pT2, pT2); self.cmul(pL16, pL8, pL8); self.cmul(pL32, pL16, pL16)
        L64, L128 = pW, pW + 2
        self.cmul(L64, pL32, pL32); self.cmul(L128, L64, L64)
        p(f"s_mov_b32 s10, 0\ns_mov_b32 s11, -1")
        p(f"s_bitcmp1_b32 {sW}, 0\ns_cselect_b64 s[12:13], -1, 0\ns_bitcmp1_b32 {sW}, 1\ns_cselect_b64 s[14:15], -1, 0")
        for (dst, src, m) in ((pT, pL16, "s[10:11]"), (pT2, pL32, "s[12:13]"), (pW + 4, L64, "s[14:15]")):
            p(f"v_cndmask_b32 v{dst}, 1.0, v{src}, {m}\nv_cndmask_b32 v{dst+1}, 0, v{src+1}, {m}")
        self.cmul(pW + 6, pT, pT2); self.cmul(pT, pW + 6, pW + 4)
        self.cmul(pT2, pT, pL8)
        p(f"v_mov_b32 v{pPRE}, v{pT}\nv_mov_b32 v{pPRE+1}, v{pT2}\nv_mov_b32 v{pPIM}, v{pT+1}\nv_mov_b32 v{pPIM+1}, v{pT2+1}")
        self.cmul(pT2, pT, pT); self.cmul(pT, pT2, pT2); self.cmul(pT2, pT, pT); self.cmul(pV0, pT2, pT2)
        self.cmul(pV1, pV0, L128)

    def xn_load(self):
        p = self.p; t = vT
        p(f"""v_and_b32 v{t[0]}, 3, v1
              v_lshlrev_b32 v{t[0]}, 2, v{t[0]}
              s_lshl_b32 s34, {sRB}, 9
              s_lshl_b32 s3, {sW}, 4
              s_add_u32 s34, s34, s3
              s_add_u32 s34, s34, {FLAGS}""")
        self.poll([f"buffer_load_dword v{t[1]}, v{t[0]}, {RWS}, s34 offen sc1"], [f"v_cmp_ne_u32 vcc, {sTAG}, v{t[1]}"])
        self.stamp()
        p(f"s_lshl_b32 s34, {sRG}, 15")
        self.tx = []
        for ks in range(32):
            if ks and ks % 4 == 0: p("s_add_u32 s34, s34, 4096")
            off = f" offset:{(ks&3)*1024}" if ks & 3 else ""
            self.tx.append(p(f"buffer_load_dwordx4 {a(XA+4*ks,4)}, v{vL16}, {RWS}, s34 offen{off} sc1"))

    def ssm_mfma(self):
        p = self.p
        rd = {}
        def issue(ks):
            for c in range(2):
                slot = RING + ((2*ks + c) % 8) * 4
                rd[(ks, c)] = p(f"ds_read_b128 {v(slot,4)}, v{vRI[ks&3]} offset:{(ks>>2)*4096 + c*WSHI}")
        for ks in range(3): issue(ks)
        for ks in range(32):
            for c in range(2):
                slot = RING + ((2*ks + c) % 8) * 4
                p.wait(self.tx[ks], rd[(ks, c)])
                acc = v(ACC_RE if c == 0 else ACC_IM, 16)
                p(f"v_mfma_f32_32x32x16_bf16 {acc}, {a(XA+4*ks,4)}, {v(slot,4)}, {acc if ks else 0}")
            if ks + 3 < 32: issue(ks + 3)

    def ffn_mfma(self, i):
        p = self.p
        rd = {}
        base, boff = (vTF[0], 32768 * i) if i < 2 else (vTF[1], 0)
        def issue(ks):
            slot = RING + (ks % 8) * 4
            rd[ks] = [p(f"ds_read_b64_tr_b16 {v(slot+2*x,2)}, v{base} offset:{boff + ks*1024 + x*256}") for x in range(2)]
        for ks in range(4): issue(ks)
        acc = v(ACC_F[i], 16)
        for ks in range(32):
            slot = RING + (ks % 8) * 4
            p.wait(rd[ks])
            p(f"v_mfma_f32_32x32x16_bf16 {acc}, {v(slot,4)}, {a(XA+4*ks,4)}, {acc if ks else 0}")
            if ks + 4 < 32: issue(ks + 4)

    def ffn_store(self, i):
        p = self.p
        o = CVT + (i % 2) * 8
        for n in range(8):
            p(f"v_cvt_pk_bf16_f32 v{o+n}, v{ACC_F[i]+2*n}, v{ACC_F[i]+2*n+1}")
        for n in range(8):
            p(f"v_pk_max_i16 v{o+n}, v{o+n}, 0")
        p(f"s_mul_i32 s34, {sRG}, {HRG}\ns_lshl_b32 s3, s{4+i}, 11\ns_add_u32 s34, s34, s3\ns_add_u32 s34, s34, {HOFF}")
        self.tH += [p(f"buffer_store_dwordx4 {v(o,4)}, v{vL16}, {RWS}, s34 offen sc1"),
                    p(f"buffer_store_dwordx4 {v(o+4,4)}, v{vL16}, {RWS}, s34 offen offset:1024 sc1")]

    def scan1(self):
        p = self.p; t = vT
        RE = lambda s: P(ACC_RE + 2*s); IM = lambda s: P(ACC_IM + 2*s)
        for s in range(1, 8):
            p(f"v_pk_fma_f32 {RE(s)}, {P(pL)}, {RE(s-1)}, {RE(s)} op_sel_hi:[0,1,1]")
            p(f"v_pk_fma_f32 {IM(s)}, {P(pL)}, {IM(s-1)}, {IM(s)} op_sel_hi:[0,1,1]")
            p(f"v_pk_fma_f32 {RE(s)}, {P(pL)}, {IM(s-1)}, {RE(s)} op_sel:[1,0,0] op_sel_hi:[1,1,1] neg_lo:[1,0,0] neg_hi:[1,0,0]")
            p(f"v_pk_fma_f32 {IM(s)}, {P(pL)}, {RE(s-1)}, {IM(s)} op_sel:[1,0,0] op_sel_hi:[1,1,1]")
        aAr, aAi, aBr, aBi = ACC_RE + 14, ACC_IM + 14, ACC_RE + 15, ACC_IM + 15
        p(f"""v_fma_f32 v{pT}, v{pL8}, v{aAr}, v{aBr}
              v_fma_f32 v{pT+1}, v{pL8}, v{aAi}, v{aBi}
              v_fma_f32 v{pT}, -v{pL8+1}, v{aAi}, v{pT}
              v_fma_f32 v{pT+1}, v{pL8+1}, v{aAr}, v{pT+1}
              v_mov_b32 v{pT2}, v{pT}
              v_mov_b32 v{pT2+1}, v{pT+1}
              v_permlane32_swap_b32 v{pT}, v{pT2}
              v_permlane32_swap_b32 v{pT+1}, v{pT2+1}""")
        self.cfma(pW, pL16, pT, pT2)
        p(f"""v_and_b32 v{t[0]}, 31, v1
              v_lshlrev_b32 v{t[0]}, 3, v{t[0]}
              v_add_u32 v{t[0]}, {SCR+1024}, v{t[0]}
              s_lshl_b32 s3, {sW}, 8
              v_add_u32 v{t[1]}, s3, v{t[0]}""")
        w = p(f"ds_write_b64 v{t[1]}, {P(pW)}")
        p.wait(w); p("s_barrier")
        r0 = p(f"ds_read2_b64 v[{pW}:{pW+3}], v{t[0]} offset0:0 offset1:32")
        r1 = p(f"ds_read2_b64 v[{pW+4}:{pW+7}], v{t[0]} offset0:64 offset1:96")
        p(f"""s_lshl_b32 s34, {sRB}, 4
              s_add_u32 s34, s34, {sCG}
              s_lshl_b32 s34, s34, 9
              s_add_u32 s34, s34, {AGG}""")
        p.wait(r0, r1)
        c2, c3, A = pKRE, pKIM, pS
        self.cfma(c2, pL32, pW, pW + 2); self.cfma(c3, pL32, c2, pW + 4); self.cfma(A, pL32, c3, pW + 6)
        p(f"""v_mov_b32 v{LBK}, v{A}
              v_mov_b32 v{LBK+1}, {sTAG}
              v_mov_b32 v{LBK+2}, v{A+1}
              v_mov_b32 v{LBK+3}, {sTAG}""")
        p(f"s_lshl_b32 s3, {sW}, 3\ns_lshl_b64 exec, 0xff, s3")
        self.tagg = p(f"buffer_store_dwordx4 v[{LBK}:{LBK+3}], v{vL16}, {RWS}, s34 offen sc1")
        p("s_mov_b64 exec, -1")
        for e in range(2):
            p(f"""v_cndmask_b32 v{pW+2+e}, 0, v{pW+e}, s[12:13]
                  v_cndmask_b32 v{pW+4+e}, v{c2+e}, v{c3+e}, s[12:13]
                  v_cndmask_b32 v{pW+e}, v{pW+2+e}, v{pW+4+e}, s[14:15]""")
        self.cfma(pW + 2, pL16, pW, pT)
        p(f"v_cndmask_b32 v{pCRE}, v{pW}, v{pW+2}, s[10:11]\nv_cndmask_b32 v{pCIM}, v{pW+1}, v{pW+3}, s[10:11]")
        p(f"""v_fma_f32 v{pCRE+1}, v{pL8}, v{pCRE}, v{aAr}
              v_fma_f32 v{pCIM+1}, v{pL8}, v{pCIM}, v{aAi}
              v_fma_f32 v{pCRE+1}, -v{pL8+1}, v{pCIM}, v{pCRE+1}
              v_fma_f32 v{pCIM+1}, v{pL8+1}, v{pCRE}, v{pCIM+1}""")

    def shadow(self):
        p = self.p
        RE = lambda s: P(ACC_RE + 2*s); IM = lambda s: P(ACC_IM + 2*s); G = lambda s: P(GRE + 2*s)
        for s in range(8):
            p(f"v_pk_mul_f32 {G(s)}, {P(pC2)}, {RE(s)} op_sel_hi:[0,1]")
            p(f"v_pk_fma_f32 {G(s)}, {P(pC2)}, {IM(s)}, {G(s)} op_sel:[1,0,0] op_sel_hi:[1,1,1] neg_lo:[1,0,0] neg_hi:[1,0,0]")
            p(f"v_pk_mul_f32 {IM(s)}, {P(pC2)}, {IM(s)} op_sel_hi:[0,1] neg_lo:[1,0] neg_hi:[1,0]")
            p(f"v_pk_fma_f32 {IM(s)}, {P(pC2)}, {RE(s)}, {IM(s)} op_sel:[1,0,0] op_sel_hi:[1,1,1] neg_lo:[1,0,0] neg_hi:[1,0,0]")

    def lookback_issue(self):
        p = self.p; t = vT
        p(f"""v_lshrrev_b32 v{t[2]}, 5, v1
              v_lshlrev_b32 v{t[2]}, 1, v{t[2]}
              s_lshl_b32 s3, {sW}, 2
              s_sub_u32 s3, {sRB}, s3
              s_sub_u32 s3, s3, 1
              v_sub_u32 v{t[2]}, s3, v{t[2]}
              v_and_b32 v{t[3]}, 31, v1
              v_lshlrev_b32 v{t[3]}, 4, v{t[3]}
              v_cmp_le_i32 s[16:17], 0, v{t[2]}
              v_cmp_le_i32 s[18:19], 1, v{t[2]}
              v_lshl_add_u32 v{t[3]}, v{t[2]}, 13, v{t[3]}
              v_mov_b32 v{t[2]}, 0x7ff00000
              v_add_u32 v{t[5]}, -8192, v{t[3]}
              v_cndmask_b32 v{t[4]}, v{t[2]}, v{t[3]}, s[16:17]
              v_cndmask_b32 v{t[5]}, v{t[2]}, v{t[5]}, s[18:19]
              s_lshl_b32 s9, {sCG}, 9
              s_add_u32 s9, s9, {AGG}""")
        self.lb_loads = [f"buffer_load_dwordx4 v[{LBK}:{LBK+3}], v{t[4]}, {RWS}, s9 offen sc1",
                         f"buffer_load_dwordx4 v[{LBK+4}:{LBK+7}], v{t[5]}, {RWS}, s9 offen sc1"]
        p.wait(self.tagg)
        self.tlb = [p(l) for l in self.lb_loads]

    def lookback_finish(self, extra_wait=()):
        p = self.p; t = vT
        chk = [f"v_cmp_ne_u32 s[20:21], {sTAG}, v{LBK+1}", f"v_cmp_ne_u32 s[22:23], {sTAG}, v{LBK+3}",
               f"v_cmp_ne_u32 s[24:25], {sTAG}, v{LBK+5}", f"v_cmp_ne_u32 s[26:27], {sTAG}, v{LBK+7}",
               "s_or_b64 s[20:21], s[20:21], s[22:23]", "s_or_b64 s[24:25], s[24:25], s[26:27]",
               "s_and_b64 s[20:21], s[20:21], s[16:17]", "s_and_b64 s[24:25], s[24:25], s[18:19]",
               "s_or_b64 vcc, s[20:21], s[24:25]"]
        self.poll(self.lb_loads, chk, pre=self.tlb)
        p(f"v_mov_b32 v{LBK+1}, v{LBK+2}\nv_mov_b32 v{LBK+5}, v{LBK+6}")
        self.cmul(pT, pV0, LBK); self.cfma(pT2, pV1, LBK + 4, pT)
        p(f"""v_mov_b32 v{pT}, v{pT2}
              v_mov_b32 v{pT+1}, v{pT2+1}
              v_permlane32_swap_b32 v{pT}, v{pT2}
              v_permlane32_swap_b32 v{pT+1}, v{pT2+1}
              v_pk_add_f32 {P(pT)}, {P(pT)}, {P(pT2)}""")
        w = p(f"ds_write_b64 v{t[1]}, {P(pT)} offset:1024")
        p.wait(w, *extra_wait); p("s_barrier")
        r0 = p(f"ds_read2_b64 v[{pW}:{pW+3}], v{t[0]} offset0:128 offset1:160")
        r1 = p(f"ds_read2_b64 v[{pW+4}:{pW+7}], v{t[0]} offset0:192 offset1:224")
        p.wait(r0, r1)
        p(f"""v_pk_add_f32 {P(pW)}, {P(pW)}, {P(pW+2)}
              v_pk_add_f32 {P(pW+4)}, {P(pW+4)}, {P(pW+6)}
              v_pk_add_f32 {P(pS)}, {P(pW)}, {P(pW+4)}""")
        p(f"""v_pk_fma_f32 {P(pKRE)}, {P(pPRE)}, {P(pS)}, {P(pCRE)} op_sel_hi:[1,0,1]
              v_pk_fma_f32 {P(pKIM)}, {P(pPIM)}, {P(pS)}, {P(pCIM)} op_sel_hi:[1,0,1]
              v_pk_fma_f32 {P(pKRE)}, {P(pPIM)}, {P(pS)}, {P(pKRE)} op_sel:[0,1,0] op_sel_hi:[1,1,1] neg_lo:[1,0,0] neg_hi:[1,0,0]
              v_pk_fma_f32 {P(pKIM)}, {P(pPRE)}, {P(pS)}, {P(pKIM)} op_sel:[0,1,0] op_sel_hi:[1,1,1]""")

    def scan2(self):
        p = self.p; t = vT
        IM = lambda s: P(ACC_IM + 2*s); G = lambda s: P(GRE + 2*s); Q = lambda s: P(pQ + 2*s)
        for s in range(8):
            p(f"v_pk_fma_f32 {G(s)}, {Q(s)}, {P(pKRE)}, {G(s)} op_sel_hi:[0,1,1]")
            p(f"v_pk_fma_f32 {IM(s)}, {Q(s)}, {P(pKIM)}, {IM(s)} op_sel_hi:[0,1,1] neg_lo:[1,0,0] neg_hi:[1,0,0]")
            p(f"v_pk_fma_f32 {G(s)}, {Q(s)}, {P(pKIM)}, {G(s)} op_sel:[1,0,0] op_sel_hi:[1,1,1] neg_lo:[1,0,0] neg_hi:[1,0,0]")
            p(f"v_pk_fma_f32 {IM(s)}, {Q(s)}, {P(pKRE)}, {IM(s)} op_sel:[1,0,0] op_sel_hi:[1,1,1] neg_lo:[1,0,0] neg_hi:[1,0,0]")
        O = ACC_RE
        ws = []
        for c, src in enumerate((GRE, ACC_IM)):
            for n in range(8): p(f"v_cvt_pk_bf16_f32 v{O+8*c+n}, v{src+2*n}, v{src+2*n+1}")
        for q in range(4):
            if q: p(f"v_xor_b32 v{vHW+1}, {16*q}, v{vHW}")
            for c in range(2):
                ws.append(p(f"ds_write_b64 v{vHW + (1 if q else 0)}, {P(O+8*c+2*q)} offset:{2048*c}"))
        p.wait(ws)
        rs = []
        for c in range(2):
            for j in range(2):
                for x in range(2):
                    rs.append(p(f"ds_read_b64_tr_b16 {P(GRE+8*c+4*j+2*x)}, v{vHR+x} offset:{2048*c+1024*j}"))
        p(f"s_mul_i32 s34, {sRG}, {HRG}\ns_lshl_b32 s3, {sCG}, 11\ns_add_u32 s34, s34, s3\ns_add_u32 s34, s34, {HOFF+86*1024}\ns_add_u32 s35, s34, 32768")
        for c in range(2):
            for j in range(2):
                p.wait(rs[4*c+2*j: 4*c+2*j+2])
                self.tH.append(p(f"buffer_store_dwordx4 {v(GRE+8*c+4*j,4)}, v{vL16}, {RWS}, s{34+c} offen offset:{1024*j} sc1"))

    def c_prefetch(self):
        p = self.p
        for q in range(4): p(f"v_add_u32 v{vRC[q]}, s8, v{vRI[q]}")
        p(f"s_lshr_b32 s28, {sCG}, 1\ns_lshl_b32 s28, s28, 16\ns_and_b32 s3, {sW}, 1\ns_lshl_b32 s3, s3, 9\ns_add_u32 s28, s28, s3")
        units = [(b, dh) for b in range(4) for dh in range(2)]
        tk = {}; rd = {}
        def dma(u):
            b, dh = units[u]
            p(f"s_add_u32 s34, s28, {dh*32768 + b*128}")
            tk[u] = self.dma4(vI, RC, "s34", f"s_add_u32 m0, s8, {WSHI + (u&1)*4096}")
        dma(0); dma(1)
        for u in range(8):
            b, dh = units[u]
            p.wait(tk[u])
            rd[u] = [p(f"ds_read_b128 {a(CA + ((4*b+q)*2+dh)*4, 4)}, v{vRC[q]} offset:{WSHI + (u&1)*4096}") for q in range(4)]
            if u + 2 < 8:
                p.wait(rd[u]); dma(u + 2)
        p.wait(rd[6], rd[7])

    def w2_home(self, n):
        if n < 4: return 0, WSHI + n*2048, "s8", WSHI + n*2048
        if n < 8: return 1, (n-4)*2048, "s8", F0A + (n-4)*2048
        if n < 12: return 1, 32768 + (n-8)*2048, "s8", F1A + (n-8)*2048
        if n < 16: return 0, (n-12)*2048, "s8", WSLO + (n-12)*2048
        if n < 19: return 2, (n-16)*2048, "s7", (n-16)*2048
        return 0, WSHI + (n-19)*2048, "s8", WSHI + (n-19)*2048
    def w2_dma(self, n0, cnt, p=None):
        p = p or self.p
        _, _, sb, c = self.w2_home(n0)
        p(f"s_add_u32 s34, s29, {n0*16384}")
        tk = self.dma4(vW, RW2, "s34", f"s_add_u32 m0, {sb}, {c}", n=2*cnt, p=p)
        for i in range(cnt): self.tW2[n0 + i] = tk[2*i: 2*i+2]
    def w2_setup(self):
        p = self.p
        p(f"""s_mul_i32 s30, {sW}, 21
              s_cmp_lg_u32 {sW}, 0
              s_addc_u32 s30, s30, 0
              s_lshl_b32 s29, s30, 14
              s_lshr_b32 s3, {sCG}, 1
              s_lshl_b32 s3, s3, 7
              s_add_u32 s29, s29, s3""")
        self.tW2 = {}

    def phase2(self):
        p = self.p; t = vT
        ACC = lambda dh, rs: v(16 + (dh*2 + rs)*16, 16)
        p(f"""s_and_b32 s31, {sCG}, 1
              s_lshl_b32 s31, s31, 1
              s_lshl_b32 s3, {sRB}, 2
              s_add_u32 s31, s31, s3
              s_mul_i32 s20, s31, {HRG}
              s_add_u32 s20, s20, {HOFF}
              s_lshl_b32 s21, s30, 10
              s_add_u32 s21, s21, s20
              s_lshl_b32 s22, {sW}, 14
              s_add_u32 s22, s22, s20
              s_add_u32 s22, s22, {86*1024}""")
        p(f"""v_lshrrev_b32 v{t[2]}, 4, v1
              v_and_b32 v{t[3]}, 15, v1
              v_and_b32 v{t[4]}, 1, v{t[2]}
              v_lshrrev_b32 v{t[5]}, 1, v{t[2]}
              v_lshl_add_u32 v{t[4]}, v{t[4]}, 3, v{t[5]}
              v_lshlrev_b32 v{t[4]}, 11, v{t[4]}
              v_lshl_add_u32 v{t[6]}, v{t[3]}, 4, v{t[4]}
              v_and_b32 v{t[5]}, 1, v1
              v_bfe_u32 v{t[7]}, v1, 1, 3
              v_lshl_add_u32 v{t[5]}, v{t[5]}, 3, v{t[7]}
              v_lshl_add_u32 v{t[7]}, v{t[5]}, 4, v{t[4]}""")
        p(f"""s_lshr_b32 s3, {sW}, 1
              s_add_u32 s3, s3, s31
              s_lshl_b32 s3, s3, 5
              s_and_b32 s23, {sW}, 1
              s_lshl_b32 s23, s23, 2
              s_add_u32 s23, s23, s3
              s_lshl_b32 s23, s23, 11
              s_lshr_b32 s3, {sCG}, 1
              s_lshl_b32 s3, s3, 8
              s_add_u32 s23, s23, s3""")
        p(f"""v_and_b32 v{t[0]}, 15, v1
              v_lshlrev_b32 v{t[0]}, 2, v{t[0]}
              s_lshl_b32 s34, {sRB}, 9
              s_add_u32 s34, s34, {FLAGS+128}""")
        self.poll([f"buffer_load_dword v{t[1]}, v{t[0]}, {RWS}, s34 offen sc1"], [f"v_cmp_ne_u32 vcc, {sTAG}, v{t[1]}"])
        self.stamp()
        NS = 38; DEPTH = self.opt.get("hdepth", 12)
        hl = {}
        def hload(n):
            sreg, k = ("s21", n) if n < 22 else ("s22", n - 22)
            if k and k % 4 == 0: p(f"s_add_u32 {sreg}, {sreg}, 4096")
            off = f" offset:{(k&3)*1024}" if k & 3 else ""
            r = XA + (n % 16) * 8
            hl[n] = [p(f"buffer_load_dwordx4 {a(r,4)}, v{vL16}, {RWS}, {sreg} offen{off} sc1"),
                     p(f"buffer_load_dwordx4 {a(r+4,4)}, v{vL16B}, {RWS}, {sreg} offen{off} sc1")]
        for n in range(DEPTH): hload(n)
        NOFF = [0, 32768, 4096, 36864]
        tb = []
        for n in range(4):
            p(f"s_add_u32 s34, s23, {BASE + NOFF[n]}")
            tb.append(p(f"buffer_load_dwordx4 {v(GRE+4*n,4)}, v{t[7]}, {RWS}, s34 offen sc1"))
        rd = {}
        def wread(n):
            bs, off, _, _ = self.w2_home(n)
            p.wait(self.tW2[n])
            slot = RING + (n % 4) * 8
            rd[n] = [p(f"ds_read_b64_tr_b16 {v(slot+4*j+2*x,2)}, v{vT2[bs][j]} offset:{off + x*512}") for j in range(2) for x in range(2)]
        wread(0); wread(1)
        for n in range(NS):
            sk = None
            if n == 21:
                sk = p.label("skip"); p(f"s_sub_u32 s3, {sW}, 1\ns_cmp_lt_u32 s3, 2")
            r = XA + (n % 16) * 8
            p.wait(hl[n])
            if n < 22: p.wait(rd[n])
            if sk: p(f"s_cbranch_scc1 {sk}")
            for dh in range(2):
                for rs in range(2):
                    A = v(RING + (n % 4)*8 + 4*dh, 4) if n < 22 else a(CA + ((n-22)*2 + dh)*4, 4)
                    p(f"v_mfma_f32_32x32x16_bf16 {ACC(dh,rs)}, {A}, {a(r+4*rs,4)}, {ACC(dh,rs) if n else 0}")
            if sk: p(f"{sk}:")
            if n == 3:
                self.w2_dma(19, 2); self.w2_dma(21, 1)
            if n + 2 < 22: wread(n + 2)
            if n + DEPTH < NS: hload(n + DEPTH)
        self.stamp()
        p(f"""v_and_b32 v{t[0]}, 31, v1
              v_lshrrev_b32 v{t[1]}, 5, v1
              v_and_b32 v{t[5]}, 7, v1
              v_xor_b32 v{t[1]}, v{t[1]}, v{t[5]}
              v_lshlrev_b32 v{t[0]}, 8, v{t[0]}
              v_lshl_add_u32 v{t[0]}, v{t[1]}, 4, v{t[0]}
              v_add_u32 v{t[0]}, s8, v{t[0]}""")
        ws = []
        for q in range(4):
            if q: p(f"v_xor_b32 v{t[1]}, {32*q}, v{t[0]}")
            base = t[1] if q else t[0]
            p(f"v_add_u32 v{t[8]}, {F0A}, v{base}")
            for dh in range(2):
                ws.append(p(f"ds_write_b128 v{base}, {v(16+(dh*2+0)*16+4*q,4)} offset:{WSHI + dh*128}"))
                ws.append(p(f"ds_write_b128 v{t[8]}, {v(16+(dh*2+1)*16+4*q,4)} offset:{dh*128}"))
        p(f"""v_xor_b32 v{t[3]}, v{t[3]}, v{t[2]}
              v_lshlrev_b32 v{t[2]}, 8, v{t[2]}
              v_lshl_add_u32 v{t[2]}, v{t[3]}, 4, v{t[2]}
              s_lshr_b32 s3, {sW}, 1
              s_lshl_b32 s3, s3, 15
              s_and_b32 s34, {sW}, 1
              s_lshl_b32 s34, s34, 12
              s_add_u32 s3, s3, s34
              s_add_u32 s3, s3, {WSHI}
              v_add_u32 v{t[2]}, s3, v{t[2]}
              v_xor_b32 v{t[3]}, 64, v{t[2]}""")
        p.wait(ws); p("s_barrier")
        rs_ = {}
        for n in range(4):
            rs_[n] = [p(f"ds_read_b128 {v(16 + n*16 + 4*w, 4)}, v{t[3] if n & 1 else t[2]} offset:{w*8192 + n*1024}") for w in range(4)]
        for n in range(4):
            p.wait(rs_[n], tb[n])
            b = 16 + n*16
            for e in (0, 2):
                p(f"""v_pk_add_f32 {P(b+e)}, {P(b+e)}, {P(b+4+e)}
                      v_pk_add_f32 {P(b+8+e)}, {P(b+8+e)}, {P(b+12+e)}
                      v_pk_add_f32 {P(b+e)}, {P(b+e)}, {P(GRE+4*n+e)}
                      v_pk_add_f32 {P(b+e)}, {P(b+e)}, {P(b+8+e)}""")
            p(f"s_add_u32 s34, s23, {NOFF[n]}")
            p(f"buffer_store_dwordx4 {v(b,4)}, v{t[6]}, {ROUT}, s34 offen")

    def finish(self):
        p = self.p
        sk = p.label("ng")
        p(f"s_lshl_b32 s3, {sRB}, 4\ns_add_u32 s3, s3, {sCG}\ns_lshl_b32 s3, s3, 2\ns_add_u32 s3, s3, {sW}\ns_cmp_lg_u32 s3, {15*64}\ns_cbranch_scc1 {sk}")
        p.raw(f"""v_mov_b32 v14, {sTAG}
                  v_mov_b32 v15, {GOFF}
                  s_mov_b64 exec, 1
                  buffer_store_dword v14, v15, {RWS}, 0 offen sc1
                  s_mov_b64 exec, -1""")
        p(f"{sk}:")
        if self.stamps and self.opt.get("dbg"):
            p("s_waitcnt vmcnt(0)")
            p("s_memtime s[34:35]\ns_memrealtime s[20:21]\ns_load_dwordx2 s[24:25], s[0:1], 104\ns_waitcnt lgkmcnt(0)")
            p("s_mov_b32 s26, 256\ns_mov_b32 s27, 0x20000\nv_mov_b32 v15, 0\ns_mov_b64 exec, 1")
            p("s_not_b32 s80, s80\nv_mov_b32 v14, s80\nbuffer_atomic_umax v14, v15, s[24:27], 0 offen sc1")
            p("v_mov_b32 v14, s20\nbuffer_atomic_umax v14, v15, s[24:27], 0 offen offset:4 sc1")
            regs = [82 + 2*i for i in range(1, self.nst)] + [34]
            for i, r in enumerate(regs):
                p(f"s_sub_u32 s3, s{r}, s82\nv_mov_b32 v14, s3\nbuffer_atomic_add v14, v15, s[24:27], 0 offen offset:{8+4*i} sc1")
            p(f"buffer_atomic_umax v14, v15, s[24:27], 0 offen offset:{8+4*len(regs)} sc1")
        elif self.stamps:
            p("s_waitcnt vmcnt(0)"); self.stamp_last = True
            p(f"s_memtime s[34:35]\ns_waitcnt lgkmcnt(0)")
            p(f"s_lshl_b32 s3, s3, 6\ns_add_u32 s3, s3, {TS}\nv_mov_b32 v15, 0\ns_mov_b64 exec, 1")
            regs = [80] + [82 + 2*i for i in range(self.nst)] + [34]
            for i, r in enumerate(regs):
                p(f"v_mov_b32 v14, s{r}\nbuffer_store_dword v14, v15, {RWS}, s3 offen offset:{4*i}")
        p("L_END:\ns_endpgm")

    def build(self):
        p = self.p
        self.prologue(); self.phase0(); self.addrs(); self.params(); self.xn_load()
        self.ssm_mfma(); self.stamp()
        self.scan1()
        self.fdma(2, WSLO)
        self.tH = []
        self.lookback_issue()
        self.shadow()
        self.ffn_mfma(0); self.ffn_store(0)
        self.ffn_mfma(1); self.ffn_store(1)
        self.lookback_finish(extra_wait=self.tF[2]); self.stamp()
        self.scan2()
        self.ffn_mfma(2); p.wait(self.tH[0:2]); self.ffn_store(2)
        self.c_prefetch()
        p.wait(self.tH, self.tbase); p("s_barrier"); self.flag(1)
        self.w2_setup()
        for n0 in range(0, 18, 2): self.w2_dma(n0, 2)
        self.w2_dma(18, 1)
        self.phase2(); self.finish()
        body = finalize(p.items, verbose=True)
        hdr = open(f"cdna_kernels/{NAME}.s.ref").read().split("; Override")[0]
        k = self.kname
        launch = "; @launch grid=(256,1,1) block=(256,1,1) lds=163840" if k == NAME + "_kernel" else f"; @launch kernel={k} grid=(256,1,1) block=(256,1,1) lds=163840"
        return (hdr + launch + "\n" + '.amdgcn_target "amdgcn-amd-amdhsa--gfx950"\n.text\n' + f".globl {k}\n.p2align 8\n.type {k},@function\n{k}:\n"
                + "\n".join(body) + "\n" + f""".section .rodata,"a"
.p2align 6
.amdhsa_kernel {k}
  .amdhsa_next_free_vgpr 512
  .amdhsa_next_free_sgpr 102
  .amdhsa_accum_offset 256
  .amdhsa_group_segment_fixed_size 0
  .amdhsa_kernarg_size 120
  .amdhsa_user_sgpr_count 2
  .amdhsa_user_sgpr_kernarg_segment_ptr 1
  .amdhsa_system_sgpr_workgroup_id_x 1
.end_amdhsa_kernel
""")

if __name__ == "__main__":
    args = [x for x in sys.argv[1:] if "=" not in x]; kw = {x.split("=")[0]: int(x.split("=")[1]) for x in sys.argv[1:] if "=" in x}
    out = args[0] if args else f"cdna_kernels/{NAME}.s"
    open(out, "w").write(Gen(**kw).build())
```

```python
import sys, math
sys.path.insert(0, "dev")
from asmlib import *

NAME = "parallel_sum__ssm_conv_s5__dense_activation_relu__prompt"
XN, BASE, HOFF, AGG, FLAGS, GOFF, TS, WS_SIZE = 0, 0x200000, 0x600000, 0xF60000, 0xF80000, 0xF90000, 0xFA0000, 0x1000000
HRG = 150 * 1024
WSLO, WSHI, F0A, F1A, PRIV, SCR = 0, 32768, 65536, 98304, 131072, 155648
PSTR = 6144
RBRE, RBIM, RC, RW1, RW2, RWS, ROUT = "s[36:39]", "s[40:43]", "s[44:47]", "s[48:51]", "s[52:55]", "s[56:59]", "s[60:63]"
sRB, sCG, sW, sTAG, sBUD, sRG = "s64", "s65", "s66", "s67", "s68", "s69"
vL = "v1"
vI = [2, 3, 4, 5]; vF = [6, 7, 8, 9]; vW = [10, 11, 12, 13]
ACC_RE, ACC_IM, ACC_F = 16, 32, [48, 64, 80]
RING = 96
vRI = [128, 129, 130, 131]; vTF = [132, 133]; vT2 = [[134, 135], [136, 137], [138, 139]]
vL16 = 140; vRC = [141, 142, 143, 144]; vL16B = 145
pL, pL8, pL16, pL32, pC2, pQ, pPRE, pPIM, pV0, pV1 = 146, 148, 150, 152, 154, 156, 172, 174, 176, 178
pT, pT2, pW, pCRE, pCIM, pKRE, pKIM, pS, GRE, LBK, CVT = 180, 182, 184, 192, 194, 196, 198, 200, 202, 218, 226
vHW, vHR = 242, 244
vT = [246, 247, 248, 249, 250, 251, 252, 253, 254, 255]
XA, CA = 0, 128

def v(n, c=1): return f"v{n}" if c == 1 else f"v[{n}:{n+c-1}]"
def a(n, c=1): return f"a{n}" if c == 1 else f"a[{n}:{n+c-1}]"
def P(n): return f"v[{n}:{n+1}]"

class Gen:
    def __init__(self, stamps=False, kname=None, **opt):
        self.p = Prog(); self.stamps = stamps; self.nst = 0; self.opt = opt
        self.kname = kname or NAME + "_kernel"
        self.bl = ["", " sc1", " sc0 sc1", " nt"][opt.get("bl", 1)]
    def stamp(self):
        if self.stamps and self.nst < 10:
            self.p(f"s_memtime s[{82+2*self.nst}:{83+2*self.nst}]"); self.nst += 1
    def cmul(self, z, x, y):
        assert z != x and z != y
        self.p(f"v_pk_mul_f32 {P(z)}, {P(x)}, {P(y)} op_sel:[0,0] op_sel_hi:[0,1]")
        self.p(f"v_pk_fma_f32 {P(z)}, {P(x)}, {P(y)}, {P(z)} op_sel:[1,1,0] op_sel_hi:[1,0,1] neg_lo:[1,0,0]")
    def cfma(self, z, x, y, c):
        assert z != x and z != y
        self.p(f"v_pk_fma_f32 {P(z)}, {P(x)}, {P(y)}, {P(c)} op_sel:[0,0,0] op_sel_hi:[0,1,1]")
        self.p(f"v_pk_fma_f32 {P(z)}, {P(x)}, {P(y)}, {P(z)} op_sel:[1,1,0] op_sel_hi:[1,0,1] neg_lo:[1,0,0]")
    def bf16r(self, d, s):
        self.p(f"v_cvt_pk_bf16_f32 v{d}, v{s}, v{s}")
        self.p(f"v_and_b32 v{d}, 0xffff0000, v{d}")
    def srd(self, r, lo, hi, n):
        b = int(r[2:r.index(":")])
        self.p(f"s_mov_b32 s{b}, {lo}\ns_mov_b32 s{b+1}, {hi}\ns_mov_b32 s{b+2}, {n}\ns_mov_b32 s{b+3}, 0x20000")
    def dma4(self, vregs, srd, soff, m0expr, n=4, p=None):
        p = p or self.p
        p(m0expr)
        toks = []
        for g in range(n):
            off = f" offset:{g*1024}" if g else ""
            toks.append(p(f"buffer_load_dwordx4 v{vregs[g]}, {srd}, {soff} offen{off} lds"))
        return toks
    def poll(self, loads, checks, pre=None):
        p = self.p
        toks = pre if pre is not None else [p(l) for l in loads]
        p.wait(toks)
        for c in checks: p(c)
        d, r = p.label("done"), p.label("retry")
        p(f"s_cbranch_vccz {d}")
        p.raw(f"{r}:\ns_cmp_eq_u32 {sBUD}, 0\ns_cbranch_scc1 {d}\ns_sub_u32 {sBUD}, {sBUD}, 1\n" + "\n".join(loads) + "\ns_waitcnt vmcnt(0)\n" + "\n".join(checks) + f"\ns_cbranch_vccnz {r}")
        p(f"{d}:")

    def prologue(self):
        p = self.p
        p("s_cmp_ge_u32 s2, 0x100\ns_cbranch_scc1 L_END")
        p("s_load_dwordx16 s[4:19], s[0:1], 0\ns_load_dwordx8 s[20:27], s[0:1], 64\ns_load_dwordx4 s[28:31], s[0:1], 96\ns_load_dwordx2 s[32:33], s[0:1], 112")
        if self.opt.get("cpf"):
            p("s_getpc_b64 s[34:35]\nL_PC:\nv_lshlrev_b32 v14, 7, v0\nv_add_u32 v15, 0x8000, v14\nv_min_u32 v14, L_END-L_PC, v14\nv_min_u32 v15, L_END-L_PC, v15")
            p("global_load_dword a255, v14, s[34:35]\nglobal_load_dword a254, v15, s[34:35]")
        if self.stamps: p("s_memrealtime s[80:81]"); self.stamp()
        p("v_and_b32 v1, 63, v0\nv_lshrrev_b32 v14, 6, v0")
        p(f"s_and_b32 s3, s2, 7\ns_lshr_b32 s34, s2, 3")
        p(f"v_readfirstlane_b32 {sW}, v14")
        p(f"""s_lshr_b32 {sRB}, s3, 1
              s_lshl_b32 {sRB}, {sRB}, 2
              s_lshr_b32 s35, s34, 3
              s_add_u32 {sRB}, {sRB}, s35
              s_and_b32 {sCG}, s3, 1
              s_lshl_b32 {sCG}, {sCG}, 3
              s_and_b32 s35, s34, 7
              s_add_u32 {sCG}, {sCG}, s35
              s_lshl_b32 {sRG}, {sRB}, 2
              s_add_u32 {sRG}, {sRG}, {sW}
              s_mov_b32 {sBUD}, 0x10000""")
        t = vT
        p(f"""v_lshrrev_b32 v14, 3, v1
              v_and_b32 v15, 7, v1
              v_lshrrev_b32 v{t[0]}, 5, v1
              v_lshlrev_b32 v{t[0]}, 4, v{t[0]}
              v_and_b32 v{t[1]}, 8, v1
              v_bfe_u32 v{t[2]}, v1, 4, 1
              v_or3_b32 v{t[0]}, v{t[0]}, v{t[1]}, v{t[2]}""")
        p(f"""s_lshr_b32 s72, {sCG}, 2
              s_lshl_b32 s3, {sRB}, 2
              s_add_u32 s72, s72, s3
              s_and_b32 s71, {sCG}, 3
              s_lshl_b32 s70, s72, 5
              s_lshl_b32 s3, s71, 1
              s_add_u32 s70, s70, s3
              s_lshl_b32 s73, {sW}, 8""")
        p(f"""v_add_u32 v{t[3]}, s70, v{t[0]}
              v_lshlrev_b32 v{t[3]}, 10, v{t[3]}
              v_lshl_add_u32 v{t[4]}, v15, 4, s73
              v_add_u32 v{t[5]}, v{t[3]}, v{t[4]}""")
        p(f"""v_and_b32 v{t[6]}, 31, v1
              s_lshl_b32 s3, {sCG}, 6
              v_lshl_add_u32 v{t[7]}, v{t[6]}, 1, s3""")
        p(f"""v_lshrrev_b32 v{t[8]}, 4, v1
              v_xor_b32 v{t[8]}, v{t[8]}, v15
              v_lshlrev_b32 v{t[8]}, 4, v{t[8]}
              v_lshl_add_u32 v{vI[0]}, v14, 10, v{t[8]}
              v_xor_b32 v{vI[1]}, 64, v{vI[0]}
              v_add_u32 v{vI[2]}, {7168*2}, v{vI[0]}
              v_add_u32 v{vI[3]}, {7168*3}, v{vI[1]}
              v_add_u32 v{vI[1]}, 7168, v{vI[1]}""")
        p("s_waitcnt lgkmcnt(0)")
        self.stamp()
        self.tx = [p(f"global_load_dwordx4 v[16:19], v{t[5]}, s[4:5]"),
                   p(f"global_load_dwordx4 v[20:23], v{t[5]}, s[4:5] offset:128"),
                   p(f"global_load_ushort v48, v{t[3]}, s[4:5]")]
        p(f"s_add_u32 s34, s32, {GOFF}\ns_addc_u32 s35, s33, 0\ns_load_dword {sTAG}, s[34:35], 0")
        self.srd(RBRE, "s10", "s11", 524288); self.srd(RBIM, "s12", "s13", 524288)
        p(f"s_lshl_b32 s74, {sCG}, 15\ns_add_u32 s74, s74, s73\ns_add_u32 s75, s74, 128\ns_lshl_b32 s76, {sW}, 13")
        self.tws = []
        self.tws += self.dma4(vI, RBRE, "s74", "s_mov_b32 m0, s76")
        self.tws += self.dma4(vI, RBIM, "s74", f"s_add_u32 m0, s76, {WSHI}")
        self.tws += self.dma4(vI, RBRE, "s75", "s_add_u32 m0, s76, 4096")
        self.tws += self.dma4(vI, RBIM, "s75", f"s_add_u32 m0, s76, {WSHI+4096}")
        self.tdp = [p(f"global_load_dwordx4 v[24:27], v{t[4]}, s[20:21]"),
                    p(f"global_load_dwordx4 v[28:31], v{t[4]}, s[20:21] offset:128"),
                    p(f"global_load_ushort v{pT}, v{t[7]}, s[6:7]"),
                    p(f"global_load_ushort v{pT+1}, v{t[7]}, s[8:9]"),
                    p(f"global_load_ushort v{pT2}, v{t[7]}, s[18:19]")]
        self.srd(RW1, "s24", "s25", 512 * 2752); self.srd(RW2, "s26", "s27", 1376 * 1024)
        self.srd(RWS, "s32", "s33", WS_SIZE); self.srd(ROUT, "s28", "s29", 2048 * 512 * 4)
        p(f"s_cmp_ge_u32 {sW}, 2\ns_cselect_b32 s44, s16, s14\ns_cselect_b32 s45, s17, s15\ns_mov_b32 s46, 524288\ns_mov_b32 s47, 0x20000")
        p(f"""v_lshrrev_b32 v{t[8]}, 2, v1
              v_mul_u32_u24 v{t[8]}, 2752, v{t[8]}
              v_and_b32 v{t[9]}, 3, v1
              v_lshl_add_u32 v{vF[0]}, v{t[9]}, 4, v{t[8]}
              v_add_u32 v{vF[1]}, {43008}, v{vF[0]}
              v_add_u32 v{vF[2]}, {43008*2}, v{vF[0]}
              v_add_u32 v{vF[3]}, {43008*3}, v{vF[0]}""")
        p(f"""v_lshlrev_b32 v{t[1]}, 9, v15
              v_lshl_add_u32 v{t[1]}, v14, 4, v{t[1]}
              v_lshlrev_b32 v{t[2]}, 11, v{t[0]}
              v_lshl_add_u32 v{t[2]}, v15, 4, v{t[2]}""")
        p(f"""s_lshl_b32 s3, {sW}, 6
              s_add_u32 s3, s3, {SCR}
              v_lshl_add_u32 v{t[3]}, v14, 3, s3
              v_lshlrev_b32 v{t[4]}, 3, v14
              v_add_u32 v{t[4]}, {SCR}, v{t[4]}""")

    def phase0(self):
        p = self.p; t = vT
        F = 32
        p.wait(self.tx)
        self.stamp()
        p("v_lshlrev_b32 v48, 16, v48")
        for n in range(8):
            p(f"v_lshlrev_b32 v{F+2*n}, 16, v{16+n}\nv_and_b32 v{F+2*n+1}, 0xffff0000, v{16+n}")
        D = 50
        for n in range(8):
            p(f"v_pk_add_f32 {P(D+2*n)}, {P(F+2*n)}, {P(48)} op_sel_hi:[1,0] neg_lo:[0,1] neg_hi:[0,1]")
        p(f"v_pk_add_f32 {P(66)}, {P(D)}, {P(D+2)}\nv_pk_mul_f32 {P(68)}, {P(D)}, {P(D)}")
        p(f"v_pk_fma_f32 {P(68)}, {P(D+2)}, {P(D+2)}, {P(68)}")
        for n in range(2, 8):
            p(f"v_pk_add_f32 {P(66)}, {P(66)}, {P(D+2*n)}\nv_pk_fma_f32 {P(68)}, {P(D+2*n)}, {P(D+2*n)}, {P(68)}")
        p("v_add_f32 v70, v66, v67\nv_add_f32 v71, v68, v69")
        for m in ("quad_perm:[1,0,3,2]", "quad_perm:[2,3,0,1]", "row_half_mirror"):
            p(f"v_add_f32_dpp v70, v70, v70 {m} row_mask:0xf bank_mask:0xf\nv_add_f32_dpp v71, v71, v71 {m} row_mask:0xf bank_mask:0xf")
        w = p(f"ds_write_b64 v{t[3]}, v[70:71]")
        p.wait(w); p("s_barrier")
        r0 = p(f"ds_read2_b64 v[72:75], v{t[4]} offset0:0 offset1:8")
        r1 = p(f"ds_read2_b64 v[76:79], v{t[4]} offset0:16 offset1:24")
        p.wait(r0, r1)
        p(f"""v_pk_add_f32 v[72:73], v[72:73], v[74:75]
              v_pk_add_f32 v[76:77], v[76:77], v[78:79]
              v_pk_add_f32 v[72:73], v[72:73], v[76:77]
              v_mul_f32 v72, 0x3b000000, v72
              v_mul_f32 v73, 0x3b000000, v73
              v_fma_f32 v73, -v72, v72, v73
              v_add_f32 v72, v72, v48""")
        p("v_cvt_pk_bf16_f32 v74, v72, v73\nv_lshlrev_b32 v76, 16, v74\nv_and_b32 v75, 0xffff0000, v74")
        p("v_add_f32 v75, 0x3727c5ac, v75")
        self.bf16r(75, 75)
        p("v_sqrt_f32 v75, v75")
        self.bf16r(75, 75)
        p("v_rcp_f32 v77, v75")
        X = 80
        if self.opt.get("probe1"):
            for n in range(8):
                p(f"v_pk_add_f32 {P(D+2*n)}, {P(F+2*n)}, {P(76)} op_sel_hi:[1,0] neg_lo:[0,1] neg_hi:[0,1]")
                p(f"v_pk_mul_f32 {P(D+2*n)}, {P(D+2*n)}, {P(76)} op_sel:[0,1] op_sel_hi:[1,1]")
                p(f"v_cvt_pk_bf16_f32 v{100+n}, v{D+2*n}, v{D+2*n+1}")
        for n in range(8):
            p(f"v_pk_add_f32 {P(D+2*n)}, {P(F+2*n)}, {P(76)} op_sel_hi:[1,0] neg_lo:[0,1] neg_hi:[0,1]")
        for n in range(8):
            p(f"v_cvt_pk_bf16_f32 v{X+n}, v{D+2*n}, v{D+2*n+1}")
        for n in range(8):
            p(f"v_lshlrev_b32 v{D+2*n}, 16, v{X+n}\nv_and_b32 v{D+2*n+1}, 0xffff0000, v{X+n}")
        for n in range(8):
            p(f"v_pk_mul_f32 {P(D+2*n)}, {P(D+2*n)}, {P(76)} op_sel:[0,1] op_sel_hi:[1,1]")
        for n in range(8):
            p(f"v_cvt_pk_bf16_f32 v{X+n}, v{D+2*n}, v{D+2*n+1}")
        p(f"""s_lshl_b32 s77, s72, 15
              s_lshl_b32 s3, {sW}, 13
              s_add_u32 s77, s77, s3
              s_lshl_b32 s3, s71, 7
              s_add_u32 s77, s77, s3
              s_add_u32 s78, s77, 4096""")
        XS = 100 if self.opt.get("probe1") else 80
        self.txn = [p(f"buffer_store_dwordx4 v[{XS}:{XS+3}], v{t[1]}, {RWS}, s77 offen sc1"),
                    p(f"buffer_store_dwordx4 v[{XS+4}:{XS+7}], v{t[1]}, {RWS}, s78 offen sc1")]
        self.stamp()
        p(f"""s_mul_i32 s79, {sCG}, 3
              s_lshl_b32 s3, {sCG}, 1
              s_add_u32 s3, s3, 11
              s_cmp_lt_u32 {sCG}, 11
              s_cselect_b32 s79, s79, s3
              s_cselect_b32 s3, 2, 1
              s_add_u32 s34, s79, s3""")
        p("s_mov_b32 s4, s79\ns_add_u32 s5, s79, 1\ns_mov_b32 s6, s34")
        self.tF = [[], [], []]
        self.fdma(0, F0A); self.fdma(1, F1A)
        p.wait(self.tdp[:2])
        for n in range(8):
            p(f"v_lshlrev_b32 v{D+2*n}, 16, v{X+n}\nv_and_b32 v{D+2*n+1}, 0xffff0000, v{X+n}")
            p(f"v_lshlrev_b32 v{88}, 16, v{24+n}\nv_and_b32 v{89}, 0xffff0000, v{24+n}")
            p(f"v_pk_mul_f32 {P(D+2*n)}, {P(D+2*n)}, {P(88)}")
            p(f"v_cvt_pk_bf16_f32 v90, v{D+2*n}, v{D+2*n+1}")
            p(f"v_lshlrev_b32 v{D+2*n}, 16, v90\nv_and_b32 v{D+2*n+1}, 0xffff0000, v90")
            p(f"v_pk_add_f32 {P(F+2*n)}, {P(F+2*n)}, {P(D+2*n)}")
        p(f"s_lshl_b32 s77, s70, 11\ns_lshl_b32 s3, {sW}, 9\ns_add_u32 s77, s77, s3\ns_add_u32 s77, s77, {BASE}")
        p.wait(self.txn, self.tws)
        p("s_waitcnt lgkmcnt(0)")
        p(f"s_mul_i32 {sTAG}, {sTAG}, 0x19660d\ns_add_u32 {sTAG}, {sTAG}, 0x3c6ef35f")
        p("s_barrier")
        self.flag(0)
        self.tbase = [p(f"buffer_store_dwordx4 v[{F+4*n}:{F+4*n+3}], v{t[2]}, {RWS}, s77 offen offset:{(n>>1)*256+(n&1)*128} sc1") for n in range(4)]
        self.stamp()

    def fdma(self, i, dst, p=None):
        p = p or self.p
        p(f"s_mul_i32 s34, {sW}, {128*2752}\ns_lshl_b32 s3, s{4+i}, 6\ns_add_u32 s34, s34, s3\ns_add_u32 s35, s34, {64*2752}\ns_lshl_b32 s3, {sW}, 13")
        self.tF[i] += self.dma4(vF, RW1, "s34", f"s_add_u32 m0, s3, {dst}", p=p)
        self.tF[i] += self.dma4(vF, RW1, "s35", f"s_add_u32 m0, s3, {dst+4096}", p=p)

    def flag(self, kind):
        p = self.p
        sk = p.label("nf")
        p(f"s_cmp_lg_u32 {sW}, 0\ns_cbranch_scc1 {sk}")
        p.raw(f"""s_lshl_b32 s3, {sRB}, 9
                  s_lshl_b32 s34, {sCG}, 2
                  s_add_u32 s3, s3, s34
                  s_add_u32 s3, s3, {FLAGS + kind*128}
                  v_mov_b32 v14, {sTAG}
                  v_mov_b32 v15, 0
                  s_mov_b64 exec, 1
                  buffer_store_dword v14, v15, {RWS}, s3 offen sc1
                  s_mov_b64 exec, -1""")
        p(f"{sk}:")

    def addrs(self):
        p = self.p; t = vT
        p(f"""v_and_b32 v{t[0]}, 31, v1
              v_lshrrev_b32 v{t[1]}, 5, v1
              v_bfe_u32 v{t[5]}, v1, 2, 2
              v_and_b32 v{t[3]}, 3, v1
              v_bfe_u32 v{t[4]}, v1, 4, 1
              v_bfe_u32 v{t[6]}, v1, 1, 3
              v_xor_b32 v{t[6]}, v{t[6]}, v{t[1]}""")
        p(f"""v_lshlrev_b32 v{vRI[0]}, 7, v{t[0]}
              v_lshl_add_u32 v{vRI[0]}, v{t[6]}, 4, v{vRI[0]}
              v_xor_b32 v{vRI[1]}, 32, v{vRI[0]}
              v_xor_b32 v{vRI[2]}, 64, v{vRI[0]}
              v_xor_b32 v{vRI[3]}, 96, v{vRI[0]}""")
        p(f"s_mul_i32 s7, {sW}, {PSTR}\ns_add_u32 s7, s7, {PRIV}\ns_lshl_b32 s8, {sW}, 13")
        p(f"""v_lshlrev_b32 v{vHW}, 6, v{t[0]}
              v_lshl_add_u32 v{vHW}, v{t[6]}, 3, v{vHW}
              v_add_u32 v{vHW}, s7, v{vHW}""")
        p(f"v_lshl_add_u32 v{t[7]}, v{t[1]}, 3, v{t[5]}")
        p(f"""v_and_b32 v{t[8]}, 1, v1
              v_bfe_u32 v{t[9]}, v1, 1, 1
              v_lshl_add_u32 v{t[8]}, v{t[8]}, 1, v{t[9]}
              v_lshlrev_b32 v{t[8]}, 3, v{t[8]}
              v_lshl_add_u32 v{t[8]}, v{t[4]}, 5, v{t[8]}
              v_lshl_add_u32 v{vTF[1]}, v{t[7]}, 6, v{t[8]}
              v_add_u32 v{vTF[0]}, {F0A}, v{vTF[1]}""")
        p(f"""v_lshlrev_b32 v{t[8]}, 3, v{t[3]}
              v_lshl_add_u32 v{t[8]}, v{t[4]}, 5, v{t[8]}
              v_bfe_u32 v{t[9]}, v1, 3, 1
              v_lshl_add_u32 v{t[8]}, v{t[9]}, 6, v{t[8]}
              v_lshl_add_u32 v{t[8]}, v{t[7]}, 7, v{t[8]}
              v_add_u32 v{vT2[0][0]}, s8, v{t[8]}
              v_add_u32 v{vT2[2][0]}, s7, v{t[8]}
              v_xor_b32 v{t[8]}, 64, v{t[8]}
              v_add_u32 v{vT2[0][1]}, s8, v{t[8]}
              v_add_u32 v{vT2[2][1]}, s7, v{t[8]}
              v_add_u32 v{vT2[1][0]}, 0x10000, v{vT2[0][0]}
              v_add_u32 v{vT2[1][1]}, 0x10000, v{vT2[0][1]}""")
        p(f"""v_lshl_add_u32 v{t[8]}, v{t[4]}, 2, v{t[3]}
              v_lshl_add_u32 v{t[9]}, v{t[1]}, 2, v{t[9]}
              v_xor_b32 v{t[8]}, v{t[8]}, v{t[9]}
              v_lshlrev_b32 v{t[8]}, 3, v{t[8]}
              v_lshl_add_u32 v{t[8]}, v{t[7]}, 6, v{t[8]}
              v_add_u32 v{vHR}, s7, v{t[8]}
              v_xor_b32 v{t[8]}, 16, v{t[8]}
              v_add_u32 v{t[8]}, 256, v{t[8]}
              v_add_u32 v{vHR+1}, s7, v{t[8]}""")
        p(f"v_lshlrev_b32 v{vL16}, 4, v1\nv_add_u32 v{vL16B}, {HRG}, v{vL16}")
        p(f"""v_lshrrev_b32 v{t[8]}, 3, v1
              v_and_b32 v{t[9]}, 7, v1
              v_lshlrev_b32 v{t[4]}, 2, v{t[4]}
              v_xor_b32 v{t[9]}, v{t[9]}, v{t[4]}
              v_lshlrev_b32 v{t[9]}, 4, v{t[9]}
              v_lshl_add_u32 v{vW[0]}, v{t[8]}, 10, v{t[9]}
              v_add_u32 v{vW[1]}, 7168, v{vW[0]}
              v_add_u32 v{vW[2]}, {7168*2}, v{vW[0]}
              v_add_u32 v{vW[3]}, {7168*3}, v{vW[0]}""")

    def params(self):
        p = self.p; t = vT
        p.wait(self.tdp)
        LOG2E = "0x3fb8aa3b"
        p(f"""v_lshlrev_b32 v{pT}, 16, v{pT}
              v_lshlrev_b32 v{pT+1}, 16, v{pT+1}
              v_lshlrev_b32 v{pT2}, 16, v{pT2}
              v_mul_f32 v{pT2}, {LOG2E}, v{pT2}
              v_exp_f32 v{pT2}, v{pT2}""")
        self.bf16r(pT2, pT2)
        p(f"""v_mul_f32 v{pW}, v{pT2}, v{pT}
              v_mul_f32 v{pW+1}, v{pT2}, v{pT+1}
              v_mul_f32 v{pW}, {LOG2E}, v{pW}
              v_mul_f32 v{pW+1}, 0.15915494, v{pW+1}
              v_exp_f32 v{pW}, v{pW}
              v_fract_f32 v{pW+1}, v{pW+1}
              v_cos_f32 v{pW+2}, v{pW+1}
              v_sin_f32 v{pW+3}, v{pW+1}
              v_mul_f32 v{pW+4}, v{pT}, v{pT}
              v_fma_f32 v{pW+4}, v{pT+1}, v{pT+1}, v{pW+4}
              v_mul_f32 v{pL}, v{pW}, v{pW+2}
              v_mul_f32 v{pL+1}, v{pW}, v{pW+3}
              v_rcp_f32 v{pW+4}, v{pW+4}
              v_add_f32 v{pW+5}, -1.0, v{pL}
              v_add_f32 v{pW+4}, v{pW+4}, v{pW+4}
              v_mul_f32 v{pC2}, v{pW+5}, v{pT}
              v_mul_f32 v{pC2+1}, v{pL+1}, v{pT}
              v_fma_f32 v{pC2}, v{pL+1}, v{pT+1}, v{pC2}
              v_fma_f32 v{pC2+1}, -v{pW+5}, v{pT+1}, v{pC2+1}
              v_mul_f32 v{pC2}, v{pC2}, v{pW+4}
              v_mul_f32 v{pC2+1}, v{pC2+1}, v{pW+4}""")
        self.cmul(pQ, pC2, pL)
        for s in range(1, 8): self.cmul(pQ + 2*s, pQ + 2*s - 2, pL)
        self.cmul(pT, pL, pL); self.cmul(pT2, pT, pT); self.cmul(pL8, pT2, pT2); self.cmul(pL16, pL8, pL8); self.cmul(pL32, pL16, pL16)
        L64, L128 = pW, pW + 2
        self.cmul(L64, pL32, pL32); self.cmul(L128, L64, L64)
        p(f"s_mov_b32 s10, 0\ns_mov_b32 s11, -1")
        p(f"s_bitcmp1_b32 {sW}, 0\ns_cselect_b64 s[12:13], -1, 0\ns_bitcmp1_b32 {sW}, 1\ns_cselect_b64 s[14:15], -1, 0")
        for (dst, src, m) in ((pT, pL16, "s[10:11]"), (pT2, pL32, "s[12:13]"), (pW + 4, L64, "s[14:15]")):
            p(f"v_cndmask_b32 v{dst}, 1.0, v{src}, {m}\nv_cndmask_b32 v{dst+1}, 0, v{src+1}, {m}")
        self.cmul(pW + 6, pT, pT2); self.cmul(pT, pW + 6, pW + 4)
        self.cmul(pT2, pT, pL8)
        p(f"v_mov_b32 v{pPRE}, v{pT}\nv_mov_b32 v{pPRE+1}, v{pT2}\nv_mov_b32 v{pPIM}, v{pT+1}\nv_mov_b32 v{pPIM+1}, v{pT2+1}")
        self.cmul(pT2, pT, pT); self.cmul(pT, pT2, pT2); self.cmul(pT2, pT, pT); self.cmul(pV0, pT2, pT2)
        self.cmul(pV1, pV0, L128)

    def xn_load(self):
        p = self.p; t = vT
        p(f"""v_and_b32 v{t[0]}, 3, v1
              v_lshlrev_b32 v{t[0]}, 2, v{t[0]}
              s_lshl_b32 s34, {sRB}, 9
              s_lshl_b32 s3, {sW}, 4
              s_add_u32 s34, s34, s3
              s_add_u32 s34, s34, {FLAGS}""")
        self.poll([f"buffer_load_dword v{t[1]}, v{t[0]}, {RWS}, s34 offen sc1"], [f"v_cmp_ne_u32 vcc, {sTAG}, v{t[1]}"])
        self.stamp()
        p(f"s_lshl_b32 s34, {sRG}, 15")
        self.tx = []
        for ks in range(32):
            if ks and ks % 4 == 0: p("s_add_u32 s34, s34, 4096")
            off = f" offset:{(ks&3)*1024}" if ks & 3 else ""
            self.tx.append(p(f"buffer_load_dwordx4 {a(XA+4*ks,4)}, v{vL16}, {RWS}, s34 offen{off}{self.bl}"))

    def ssm_mfma(self):
        p = self.p
        rd = {}
        def issue(ks):
            for c in range(2):
                slot = RING + ((2*ks + c) % 8) * 4
                rd[(ks, c)] = p(f"ds_read_b128 {v(slot,4)}, v{vRI[ks&3]} offset:{(ks>>2)*4096 + c*WSHI}")
        for ks in range(3): issue(ks)
        for ks in range(32):
            for c in range(2):
                slot = RING + ((2*ks + c) % 8) * 4
                p.wait(self.tx[ks], rd[(ks, c)])
                acc = v(ACC_RE if c == 0 else ACC_IM, 16)
                p(f"v_mfma_f32_32x32x16_bf16 {acc}, {a(XA+4*ks,4)}, {v(slot,4)}, {acc if ks else 0}")
            if ks + 3 < 32: issue(ks + 3)

    def ffn_mfma(self, i):
        p = self.p
        rd = {}
        base, boff = (vTF[0], 32768 * i) if i < 2 else (vTF[1], 0)
        def issue(ks):
            slot = RING + (ks % 8) * 4
            rd[ks] = [p(f"ds_read_b64_tr_b16 {v(slot+2*x,2)}, v{base} offset:{boff + ks*1024 + x*256}") for x in range(2)]
        for ks in range(4): issue(ks)
        acc = v(ACC_F[i], 16)
        for ks in range(32):
            slot = RING + (ks % 8) * 4
            p.wait(rd[ks])
            p(f"v_mfma_f32_32x32x16_bf16 {acc}, {v(slot,4)}, {a(XA+4*ks,4)}, {acc if ks else 0}")
            if ks + 4 < 32: issue(ks + 4)

    def ffn_store(self, i):
        p = self.p
        o = CVT + (i % 2) * 8
        for n in range(8):
            p(f"v_cvt_pk_bf16_f32 v{o+n}, v{ACC_F[i]+2*n}, v{ACC_F[i]+2*n+1}")
        for n in range(8):
            p(f"v_pk_max_i16 v{o+n}, v{o+n}, 0")
        p(f"s_mul_i32 s34, {sRG}, {HRG}\ns_lshl_b32 s3, s{4+i}, 11\ns_add_u32 s34, s34, s3\ns_add_u32 s34, s34, {HOFF}")
        self.tH += [p(f"buffer_store_dwordx4 {v(o,4)}, v{vL16}, {RWS}, s34 offen sc1"),
                    p(f"buffer_store_dwordx4 {v(o+4,4)}, v{vL16}, {RWS}, s34 offen offset:1024 sc1")]

    def scan1(self):
        p = self.p; t = vT
        RE = lambda s: P(ACC_RE + 2*s); IM = lambda s: P(ACC_IM + 2*s)
        for s in range(1, 8):
            p(f"v_pk_fma_f32 {RE(s)}, {P(pL)}, {RE(s-1)}, {RE(s)} op_sel_hi:[0,1,1]")
            p(f"v_pk_fma_f32 {IM(s)}, {P(pL)}, {IM(s-1)}, {IM(s)} op_sel_hi:[0,1,1]")
            p(f"v_pk_fma_f32 {RE(s)}, {P(pL)}, {IM(s-1)}, {RE(s)} op_sel:[1,0,0] op_sel_hi:[1,1,1] neg_lo:[1,0,0] neg_hi:[1,0,0]")
            p(f"v_pk_fma_f32 {IM(s)}, {P(pL)}, {RE(s-1)}, {IM(s)} op_sel:[1,0,0] op_sel_hi:[1,1,1]")
        aAr, aAi, aBr, aBi = ACC_RE + 14, ACC_IM + 14, ACC_RE + 15, ACC_IM + 15
        p(f"""v_fma_f32 v{pT}, v{pL8}, v{aAr}, v{aBr}
              v_fma_f32 v{pT+1}, v{pL8}, v{aAi}, v{aBi}
              v_fma_f32 v{pT}, -v{pL8+1}, v{aAi}, v{pT}
              v_fma_f32 v{pT+1}, v{pL8+1}, v{aAr}, v{pT+1}
              v_mov_b32 v{pT2}, v{pT}
              v_mov_b32 v{pT2+1}, v{pT+1}
              v_permlane32_swap_b32 v{pT}, v{pT2}
              v_permlane32_swap_b32 v{pT+1}, v{pT2+1}""")
        self.cfma(pW, pL16, pT, pT2)
        p(f"""v_and_b32 v{t[0]}, 31, v1
              v_lshlrev_b32 v{t[0]}, 3, v{t[0]}
              v_add_u32 v{t[0]}, {SCR+1024}, v{t[0]}
              s_lshl_b32 s3, {sW}, 8
              v_add_u32 v{t[1]}, s3, v{t[0]}""")
        w = p(f"ds_write_b64 v{t[1]}, {P(pW)}")
        p.wait(w); p("s_barrier")
        r0 = p(f"ds_read2_b64 v[{pW}:{pW+3}], v{t[0]} offset0:0 offset1:32")
        r1 = p(f"ds_read2_b64 v[{pW+4}:{pW+7}], v{t[0]} offset0:64 offset1:96")
        p(f"""s_lshl_b32 s34, {sRB}, 4
              s_add_u32 s34, s34, {sCG}
              s_lshl_b32 s34, s34, 9
              s_add_u32 s34, s34, {AGG}""")
        p.wait(r0, r1)
        c2, c3, A = pKRE, pKIM, pS
        self.cfma(c2, pL32, pW, pW + 2); self.cfma(c3, pL32, c2, pW + 4); self.cfma(A, pL32, c3, pW + 6)
        p(f"""v_mov_b32 v{LBK}, v{A}
              v_mov_b32 v{LBK+1}, {sTAG}
              v_mov_b32 v{LBK+2}, v{A+1}
              v_mov_b32 v{LBK+3}, {sTAG}""")
        p(f"s_lshl_b32 s3, {sW}, 3\ns_lshl_b64 exec, 0xff, s3")
        self.tagg = p(f"buffer_store_dwordx4 v[{LBK}:{LBK+3}], v{vL16}, {RWS}, s34 offen sc1")
        p("s_mov_b64 exec, -1")
        for e in range(2):
            p(f"""v_cndmask_b32 v{pW+2+e}, 0, v{pW+e}, s[12:13]
                  v_cndmask_b32 v{pW+4+e}, v{c2+e}, v{c3+e}, s[12:13]
                  v_cndmask_b32 v{pW+e}, v{pW+2+e}, v{pW+4+e}, s[14:15]""")
        self.cfma(pW + 2, pL16, pW, pT)
        p(f"v_cndmask_b32 v{pCRE}, v{pW}, v{pW+2}, s[10:11]\nv_cndmask_b32 v{pCIM}, v{pW+1}, v{pW+3}, s[10:11]")
        p(f"""v_fma_f32 v{pCRE+1}, v{pL8}, v{pCRE}, v{aAr}
              v_fma_f32 v{pCIM+1}, v{pL8}, v{pCIM}, v{aAi}
              v_fma_f32 v{pCRE+1}, -v{pL8+1}, v{pCIM}, v{pCRE+1}
              v_fma_f32 v{pCIM+1}, v{pL8+1}, v{pCRE}, v{pCIM+1}""")

    def shadow(self):
        p = self.p
        RE = lambda s: P(ACC_RE + 2*s); IM = lambda s: P(ACC_IM + 2*s); G = lambda s: P(GRE + 2*s)
        for s in range(8):
            p(f"v_pk_mul_f32 {G(s)}, {P(pC2)}, {RE(s)} op_sel_hi:[0,1]")
            p(f"v_pk_fma_f32 {G(s)}, {P(pC2)}, {IM(s)}, {G(s)} op_sel:[1,0,0] op_sel_hi:[1,1,1] neg_lo:[1,0,0] neg_hi:[1,0,0]")
            p(f"v_pk_mul_f32 {IM(s)}, {P(pC2)}, {IM(s)} op_sel_hi:[0,1] neg_lo:[1,0] neg_hi:[1,0]")
            p(f"v_pk_fma_f32 {IM(s)}, {P(pC2)}, {RE(s)}, {IM(s)} op_sel:[1,0,0] op_sel_hi:[1,1,1] neg_lo:[1,0,0] neg_hi:[1,0,0]")

    def lookback_issue(self):
        p = self.p; t = vT
        p(f"""v_lshrrev_b32 v{t[2]}, 5, v1
              v_lshlrev_b32 v{t[2]}, 1, v{t[2]}
              s_lshl_b32 s3, {sW}, 2
              s_sub_u32 s3, {sRB}, s3
              s_sub_u32 s3, s3, 1
              v_sub_u32 v{t[2]}, s3, v{t[2]}
              v_and_b32 v{t[3]}, 31, v1
              v_lshlrev_b32 v{t[3]}, 4, v{t[3]}
              v_cmp_le_i32 s[16:17], 0, v{t[2]}
              v_cmp_le_i32 s[18:19], 1, v{t[2]}
              v_lshl_add_u32 v{t[3]}, v{t[2]}, 13, v{t[3]}
              v_mov_b32 v{t[2]}, 0x7ff00000
              v_add_u32 v{t[5]}, -8192, v{t[3]}
              v_cndmask_b32 v{t[4]}, v{t[2]}, v{t[3]}, s[16:17]
              v_cndmask_b32 v{t[5]}, v{t[2]}, v{t[5]}, s[18:19]
              s_lshl_b32 s9, {sCG}, 9
              s_add_u32 s9, s9, {AGG}""")
        self.lb_loads = [f"buffer_load_dwordx4 v[{LBK}:{LBK+3}], v{t[4]}, {RWS}, s9 offen sc1",
                         f"buffer_load_dwordx4 v[{LBK+4}:{LBK+7}], v{t[5]}, {RWS}, s9 offen sc1"]
        p.wait(self.tagg)
        self.tlb = [p(l) for l in self.lb_loads]

    def lookback_finish(self, extra_wait=()):
        p = self.p; t = vT
        chk = [f"v_cmp_ne_u32 s[20:21], {sTAG}, v{LBK+1}", f"v_cmp_ne_u32 s[22:23], {sTAG}, v{LBK+3}",
               f"v_cmp_ne_u32 s[24:25], {sTAG}, v{LBK+5}", f"v_cmp_ne_u32 s[26:27], {sTAG}, v{LBK+7}",
               "s_or_b64 s[20:21], s[20:21], s[22:23]", "s_or_b64 s[24:25], s[24:25], s[26:27]",
               "s_and_b64 s[20:21], s[20:21], s[16:17]", "s_and_b64 s[24:25], s[24:25], s[18:19]",
               "s_or_b64 vcc, s[20:21], s[24:25]"]
        self.poll(self.lb_loads, chk, pre=self.tlb)
        p(f"v_mov_b32 v{LBK+1}, v{LBK+2}\nv_mov_b32 v{LBK+5}, v{LBK+6}")
        self.cmul(pT, pV0, LBK); self.cfma(pT2, pV1, LBK + 4, pT)
        p(f"""v_mov_b32 v{pT}, v{pT2}
              v_mov_b32 v{pT+1}, v{pT2+1}
              v_permlane32_swap_b32 v{pT}, v{pT2}
              v_permlane32_swap_b32 v{pT+1}, v{pT2+1}
              v_pk_add_f32 {P(pT)}, {P(pT)}, {P(pT2)}""")
        w = p(f"ds_write_b64 v{t[1]}, {P(pT)} offset:1024")
        p.wait(w, *extra_wait); p("s_barrier")
        r0 = p(f"ds_read2_b64 v[{pW}:{pW+3}], v{t[0]} offset0:128 offset1:160")
        r1 = p(f"ds_read2_b64 v[{pW+4}:{pW+7}], v{t[0]} offset0:192 offset1:224")
        p.wait(r0, r1)
        p(f"""v_pk_add_f32 {P(pW)}, {P(pW)}, {P(pW+2)}
              v_pk_add_f32 {P(pW+4)}, {P(pW+4)}, {P(pW+6)}
              v_pk_add_f32 {P(pS)}, {P(pW)}, {P(pW+4)}""")
        p(f"""v_pk_fma_f32 {P(pKRE)}, {P(pPRE)}, {P(pS)}, {P(pCRE)} op_sel_hi:[1,0,1]
              v_pk_fma_f32 {P(pKIM)}, {P(pPIM)}, {P(pS)}, {P(pCIM)} op_sel_hi:[1,0,1]
              v_pk_fma_f32 {P(pKRE)}, {P(pPIM)}, {P(pS)}, {P(pKRE)} op_sel:[0,1,0] op_sel_hi:[1,1,1] neg_lo:[1,0,0] neg_hi:[1,0,0]
              v_pk_fma_f32 {P(pKIM)}, {P(pPRE)}, {P(pS)}, {P(pKIM)} op_sel:[0,1,0] op_sel_hi:[1,1,1]""")

    def scan2(self):
        p = self.p; t = vT
        IM = lambda s: P(ACC_IM + 2*s); G = lambda s: P(GRE + 2*s); Q = lambda s: P(pQ + 2*s)
        for s in range(8):
            p(f"v_pk_fma_f32 {G(s)}, {Q(s)}, {P(pKRE)}, {G(s)} op_sel_hi:[0,1,1]")
            p(f"v_pk_fma_f32 {IM(s)}, {Q(s)}, {P(pKIM)}, {IM(s)} op_sel_hi:[0,1,1] neg_lo:[1,0,0] neg_hi:[1,0,0]")
            p(f"v_pk_fma_f32 {G(s)}, {Q(s)}, {P(pKIM)}, {G(s)} op_sel:[1,0,0] op_sel_hi:[1,1,1] neg_lo:[1,0,0] neg_hi:[1,0,0]")
            p(f"v_pk_fma_f32 {IM(s)}, {Q(s)}, {P(pKRE)}, {IM(s)} op_sel:[1,0,0] op_sel_hi:[1,1,1] neg_lo:[1,0,0] neg_hi:[1,0,0]")
        O = ACC_RE
        ws = []
        for c, src in enumerate((GRE, ACC_IM)):
            for n in range(8): p(f"v_cvt_pk_bf16_f32 v{O+8*c+n}, v{src+2*n}, v{src+2*n+1}")
        for q in range(4):
            if q: p(f"v_xor_b32 v{vHW+1}, {16*q}, v{vHW}")
            for c in range(2):
                ws.append(p(f"ds_write_b64 v{vHW + (1 if q else 0)}, {P(O+8*c+2*q)} offset:{2048*c}"))
        p.wait(ws)
        rs = []
        for c in range(2):
            for j in range(2):
                for x in range(2):
                    rs.append(p(f"ds_read_b64_tr_b16 {P(GRE+8*c+4*j+2*x)}, v{vHR+x} offset:{2048*c+1024*j}"))
        p(f"s_mul_i32 s34, {sRG}, {HRG}\ns_lshl_b32 s3, {sCG}, 11\ns_add_u32 s34, s34, s3\ns_add_u32 s34, s34, {HOFF+86*1024}\ns_add_u32 s35, s34, 32768")
        for c in range(2):
            for j in range(2):
                p.wait(rs[4*c+2*j: 4*c+2*j+2])
                self.tH.append(p(f"buffer_store_dwordx4 {v(GRE+8*c+4*j,4)}, v{vL16}, {RWS}, s{34+c} offen offset:{1024*j} sc1"))

    def c_prefetch(self):
        p = self.p
        for q in range(4): p(f"v_add_u32 v{vRC[q]}, s8, v{vRI[q]}")
        p(f"s_lshr_b32 s28, {sCG}, 1\ns_lshl_b32 s28, s28, 16\ns_and_b32 s3, {sW}, 1\ns_lshl_b32 s3, s3, 9\ns_add_u32 s28, s28, s3")
        units = [(b, dh) for b in range(4) for dh in range(2)]
        tk = {}; rd = {}
        def dma(u):
            b, dh = units[u]
            p(f"s_add_u32 s34, s28, {dh*32768 + b*128}")
            tk[u] = self.dma4(vI, RC, "s34", f"s_add_u32 m0, s8, {WSHI + (u&1)*4096}")
        dma(0); dma(1)
        for u in range(8):
            b, dh = units[u]
            p.wait(tk[u])
            rd[u] = [p(f"ds_read_b128 {a(CA + ((4*b+q)*2+dh)*4, 4)}, v{vRC[q]} offset:{WSHI + (u&1)*4096}") for q in range(4)]
            if u + 2 < 8:
                p.wait(rd[u]); dma(u + 2)
        p.wait(rd[6], rd[7])

    def w2_home(self, n):
        if n < 4: return 0, WSHI + n*2048, "s8", WSHI + n*2048
        if n < 8: return 1, (n-4)*2048, "s8", F0A + (n-4)*2048
        if n < 12: return 1, 32768 + (n-8)*2048, "s8", F1A + (n-8)*2048
        if n < 16: return 0, (n-12)*2048, "s8", WSLO + (n-12)*2048
        if n < 19: return 2, (n-16)*2048, "s7", (n-16)*2048
        return 0, WSHI + (n-19)*2048, "s8", WSHI + (n-19)*2048
    def w2_dma(self, n0, cnt, p=None):
        p = p or self.p
        _, _, sb, c = self.w2_home(n0)
        p(f"s_add_u32 s34, s29, {n0*16384}")
        tk = self.dma4(vW, RW2, "s34", f"s_add_u32 m0, {sb}, {c}", n=2*cnt, p=p)
        for i in range(cnt): self.tW2[n0 + i] = tk[2*i: 2*i+2]
    def w2_setup(self):
        p = self.p
        p(f"""s_mul_i32 s30, {sW}, 21
              s_cmp_lg_u32 {sW}, 0
              s_addc_u32 s30, s30, 0
              s_lshl_b32 s29, s30, 14
              s_lshr_b32 s3, {sCG}, 1
              s_lshl_b32 s3, s3, 7
              s_add_u32 s29, s29, s3""")
        self.tW2 = {}

    def phase2(self):
        p = self.p; t = vT
        ACC = lambda dh, rs: v(16 + (dh*2 + rs)*16, 16)
        p(f"""s_and_b32 s31, {sCG}, 1
              s_lshl_b32 s31, s31, 1
              s_lshl_b32 s3, {sRB}, 2
              s_add_u32 s31, s31, s3
              s_mul_i32 s20, s31, {HRG}
              s_add_u32 s20, s20, {HOFF}
              s_lshl_b32 s21, s30, 10
              s_add_u32 s21, s21, s20
              s_lshl_b32 s22, {sW}, 14
              s_add_u32 s22, s22, s20
              s_add_u32 s22, s22, {86*1024}""")
        p(f"""v_lshrrev_b32 v{t[2]}, 4, v1
              v_and_b32 v{t[3]}, 15, v1
              v_and_b32 v{t[4]}, 1, v{t[2]}
              v_lshrrev_b32 v{t[5]}, 1, v{t[2]}
              v_lshl_add_u32 v{t[4]}, v{t[4]}, 3, v{t[5]}
              v_lshlrev_b32 v{t[4]}, 11, v{t[4]}
              v_lshl_add_u32 v{t[6]}, v{t[3]}, 4, v{t[4]}
              v_and_b32 v{t[5]}, 1, v1
              v_bfe_u32 v{t[7]}, v1, 1, 3
              v_lshl_add_u32 v{t[5]}, v{t[5]}, 3, v{t[7]}
              v_lshl_add_u32 v{t[7]}, v{t[5]}, 4, v{t[4]}""")
        p(f"""s_lshr_b32 s3, {sW}, 1
              s_add_u32 s3, s3, s31
              s_lshl_b32 s3, s3, 5
              s_and_b32 s23, {sW}, 1
              s_lshl_b32 s23, s23, 2
              s_add_u32 s23, s23, s3
              s_lshl_b32 s23, s23, 11
              s_lshr_b32 s3, {sCG}, 1
              s_lshl_b32 s3, s3, 8
              s_add_u32 s23, s23, s3""")
        p(f"""v_and_b32 v{t[0]}, 15, v1
              v_lshlrev_b32 v{t[0]}, 2, v{t[0]}
              s_lshl_b32 s34, {sRB}, 9
              s_add_u32 s34, s34, {FLAGS+128}""")
        self.poll([f"buffer_load_dword v{t[1]}, v{t[0]}, {RWS}, s34 offen sc1"], [f"v_cmp_ne_u32 vcc, {sTAG}, v{t[1]}"])
        self.stamp()
        NS = 38; DEPTH = self.opt.get("hdepth", 12)
        hl = {}
        def hload(n):
            sreg, k = ("s21", n) if n < 22 else ("s22", n - 22)
            if k and k % 4 == 0: p(f"s_add_u32 {sreg}, {sreg}, 4096")
            off = f" offset:{(k&3)*1024}" if k & 3 else ""
            r = XA + (n % 16) * 8
            hl[n] = [p(f"buffer_load_dwordx4 {a(r,4)}, v{vL16}, {RWS}, {sreg} offen{off}{self.bl}"),
                     p(f"buffer_load_dwordx4 {a(r+4,4)}, v{vL16B}, {RWS}, {sreg} offen{off}{self.bl}")]
        for n in range(DEPTH): hload(n)
        NOFF = [0, 32768, 4096, 36864]
        tb = []
        for n in range(4):
            p(f"s_add_u32 s34, s23, {BASE + NOFF[n]}")
            tb.append(p(f"buffer_load_dwordx4 {v(GRE+4*n,4)}, v{t[7]}, {RWS}, s34 offen{self.bl}"))
        rd = {}
        def wread(n):
            bs, off, _, _ = self.w2_home(n)
            p.wait(self.tW2[n])
            slot = RING + (n % 4) * 8
            rd[n] = [p(f"ds_read_b64_tr_b16 {v(slot+4*j+2*x,2)}, v{vT2[bs][j]} offset:{off + x*512}") for j in range(2) for x in range(2)]
        wread(0); wread(1)
        for n in range(NS):
            sk = None
            if n == 21:
                sk = p.label("skip"); p(f"s_sub_u32 s3, {sW}, 1\ns_cmp_lt_u32 s3, 2")
            r = XA + (n % 16) * 8
            p.wait(hl[n])
            if n < 22: p.wait(rd[n])
            if sk: p(f"s_cbranch_scc1 {sk}")
            for dh in range(2):
                for rs in range(2):
                    A = v(RING + (n % 4)*8 + 4*dh, 4) if n < 22 else a(CA + ((n-22)*2 + dh)*4, 4)
                    p(f"v_mfma_f32_32x32x16_bf16 {ACC(dh,rs)}, {A}, {a(r+4*rs,4)}, {ACC(dh,rs) if n else 0}")
            if sk: p(f"{sk}:")
            if n == 3:
                self.w2_dma(19, 2); self.w2_dma(21, 1)
            if n + 2 < 22: wread(n + 2)
            if n + DEPTH < NS: hload(n + DEPTH)
        self.stamp()
        p(f"""v_and_b32 v{t[0]}, 31, v1
              v_lshrrev_b32 v{t[1]}, 5, v1
              v_and_b32 v{t[5]}, 7, v1
              v_xor_b32 v{t[1]}, v{t[1]}, v{t[5]}
              v_lshlrev_b32 v{t[0]}, 8, v{t[0]}
              v_lshl_add_u32 v{t[0]}, v{t[1]}, 4, v{t[0]}
              v_add_u32 v{t[0]}, s8, v{t[0]}""")
        ws = []
        for q in range(4):
            if q: p(f"v_xor_b32 v{t[1]}, {32*q}, v{t[0]}")
            base = t[1] if q else t[0]
            p(f"v_add_u32 v{t[8]}, {F0A}, v{base}")
            for dh in range(2):
                ws.append(p(f"ds_write_b128 v{base}, {v(16+(dh*2+0)*16+4*q,4)} offset:{WSHI + dh*128}"))
                ws.append(p(f"ds_write_b128 v{t[8]}, {v(16+(dh*2+1)*16+4*q,4)} offset:{dh*128}"))
        p(f"""v_xor_b32 v{t[3]}, v{t[3]}, v{t[2]}
              v_lshlrev_b32 v{t[2]}, 8, v{t[2]}
              v_lshl_add_u32 v{t[2]}, v{t[3]}, 4, v{t[2]}
              s_lshr_b32 s3, {sW}, 1
              s_lshl_b32 s3, s3, 15
              s_and_b32 s34, {sW}, 1
              s_lshl_b32 s34, s34, 12
              s_add_u32 s3, s3, s34
              s_add_u32 s3, s3, {WSHI}
              v_add_u32 v{t[2]}, s3, v{t[2]}
              v_xor_b32 v{t[3]}, 64, v{t[2]}""")
        p.wait(ws); p("s_barrier")
        rs_ = {}
        for n in range(4):
            rs_[n] = [p(f"ds_read_b128 {v(16 + n*16 + 4*w, 4)}, v{t[3] if n & 1 else t[2]} offset:{w*8192 + n*1024}") for w in range(4)]
        for n in range(4):
            p.wait(rs_[n], tb[n])
            b = 16 + n*16
            for e in (0, 2):
                p(f"""v_pk_add_f32 {P(b+e)}, {P(b+e)}, {P(b+4+e)}
                      v_pk_add_f32 {P(b+8+e)}, {P(b+8+e)}, {P(b+12+e)}
                      v_pk_add_f32 {P(b+e)}, {P(b+e)}, {P(GRE+4*n+e)}
                      v_pk_add_f32 {P(b+e)}, {P(b+e)}, {P(b+8+e)}""")
            p(f"s_add_u32 s34, s23, {NOFF[n]}")
            p(f"buffer_store_dwordx4 {v(b,4)}, v{t[6]}, {ROUT}, s34 offen" + ["", " sc1", " sc0 sc1", " nt", " sc1 nt"][self.opt.get("os", 0)])

    def finish(self):
        p = self.p
        sk = p.label("ng")
        p(f"s_lshl_b32 s3, {sRB}, 4\ns_add_u32 s3, s3, {sCG}\ns_lshl_b32 s3, s3, 2\ns_add_u32 s3, s3, {sW}\ns_cmp_lg_u32 s3, {15*64}\ns_cbranch_scc1 {sk}")
        p.raw(f"""v_mov_b32 v14, {sTAG}
                  v_mov_b32 v15, {GOFF}
                  s_mov_b64 exec, 1
                  buffer_store_dword v14, v15, {RWS}, 0 offen sc1
                  s_mov_b64 exec, -1""")
        p(f"{sk}:")
        if self.stamps and self.opt.get("dbg"):
            p("s_waitcnt vmcnt(0)")
            p("s_memtime s[34:35]\ns_memrealtime s[20:21]\ns_load_dwordx2 s[24:25], s[0:1], 104\ns_waitcnt lgkmcnt(0)")
            p("s_mov_b32 s26, 256\ns_mov_b32 s27, 0x20000\nv_mov_b32 v15, 0\ns_mov_b64 exec, 1")
            p("s_not_b32 s80, s80\nv_mov_b32 v14, s80\nbuffer_atomic_umax v14, v15, s[24:27], 0 offen sc1")
            p("v_mov_b32 v14, s20\nbuffer_atomic_umax v14, v15, s[24:27], 0 offen offset:4 sc1")
            regs = [82 + 2*i for i in range(1, self.nst)] + [34]
            for i, r in enumerate(regs):
                p(f"s_sub_u32 s3, s{r}, s82\nv_mov_b32 v14, s3\nbuffer_atomic_add v14, v15, s[24:27], 0 offen offset:{8+4*i} sc1")
            p(f"buffer_atomic_umax v14, v15, s[24:27], 0 offen offset:{8+4*len(regs)} sc1")
        elif self.stamps:
            p("s_waitcnt vmcnt(0)"); self.stamp_last = True
            p(f"s_memtime s[34:35]\ns_waitcnt lgkmcnt(0)")
            p(f"s_lshl_b32 s3, s3, 6\ns_add_u32 s3, s3, {TS}\nv_mov_b32 v15, 0\ns_mov_b64 exec, 1")
            regs = [80] + [82 + 2*i for i in range(self.nst)] + [34]
            for i, r in enumerate(regs):
                p(f"v_mov_b32 v14, s{r}\nbuffer_store_dword v14, v15, {RWS}, s3 offen offset:{4*i}")
        p("L_END:\ns_endpgm")

    def build(self):
        p = self.p
        self.prologue(); self.phase0(); self.addrs(); self.params(); self.xn_load()
        self.ssm_mfma(); self.stamp()
        self.scan1()
        self.fdma(2, WSLO)
        self.tH = []
        self.lookback_issue()
        self.shadow()
        self.ffn_mfma(0); self.ffn_store(0)
        self.ffn_mfma(1); self.ffn_store(1)
        self.lookback_finish(extra_wait=self.tF[2]); self.stamp()
        self.scan2()
        self.ffn_mfma(2); p.wait(self.tH[0:2]); self.ffn_store(2)
        self.c_prefetch()
        p.wait(self.tH, self.tbase); p("s_barrier"); self.flag(1)
        self.w2_setup()
        for n0 in range(0, 18, 2): self.w2_dma(n0, 2)
        self.w2_dma(18, 1)
        self.phase2(); self.finish()
        body = finalize(p.items, verbose=True)
        hdr = open(f"cdna_kernels/{NAME}.s.ref").read().split("; Override")[0]
        k = self.kname
        launch = "; @launch grid=(256,1,1) block=(256,1,1) lds=163840" if k == NAME + "_kernel" else f"; @launch kernel={k} grid=(256,1,1) block=(256,1,1) lds=163840"
        return (hdr + launch + "\n" + '.amdgcn_target "amdgcn-amd-amdhsa--gfx950"\n.text\n' + f".globl {k}\n.p2align 8\n.type {k},@function\n{k}:\n"
                + "\n".join(body) + "\n" + f""".section .rodata,"a"
.p2align 6
.amdhsa_kernel {k}
  .amdhsa_next_free_vgpr 512
  .amdhsa_next_free_sgpr 102
  .amdhsa_accum_offset 256
  .amdhsa_group_segment_fixed_size 0
  .amdhsa_kernarg_size 120
  .amdhsa_user_sgpr_count 2
  .amdhsa_user_sgpr_kernarg_segment_ptr 1
  .amdhsa_system_sgpr_workgroup_id_x 1
.end_amdhsa_kernel
""")

if __name__ == "__main__":
    args = [x for x in sys.argv[1:] if "=" not in x]; kw = {x.split("=")[0]: int(x.split("=")[1]) for x in sys.argv[1:] if "=" in x}
    out = args[0] if args else f"cdna_kernels/{NAME}.s"
    open(out, "w").write(Gen(**kw).build())
```

```python
import sys, math
sys.path.insert(0, "dev")
from asmlib import *

NAME = "parallel_sum__ssm_conv_s5__dense_activation_relu__prompt"
ST, AGG, FL, GOFF, XCH, HOFF, TS, WS_SIZE = 0, 0x10000, 0x40000, 0x48000, 0x50000, 0x680000, 0x1280000, 0x1300000
HSZ = 98304; HK = [32768, 49152, 65536, 0]
RA, RB, RC, RD, RE = 0, 0x8000, 0x10000, 0x18000, 0x20000
CSX = RC + 0x5000
AGX = RC + 0x7000
LBX = AGX + 1024
STX = AGX + 2048
RX, RBRE, RBIM, RCC, RW1, RW2, RWS, ROUT = ["s[%d:%d]" % (36 + 4*i, 39 + 4*i) for i in range(8)]
sRB, sCG, sW, sTAG, sBUD, sRG, sC, sQ, sC0, sW8, sN = ["s%d" % i for i in range(68, 79)]
sCX, sHB, sFLW, sXO = "s4", "s5", "s6", "s7"
sF = ["s0", "s1"]; sF2, sWX, sXX = "s2", "s76", "s78"
MH, MW0, MW1, MV0, MV1, M16 = "s[10:11]", "s[12:13]", "s[14:15]", "s[16:17]", "s[18:19]", "s[8:9]"
vI = [2, 3, 4, 5]; vX = [6, 7, 8, 9]; vF = [10, 11, 12, 13]; vW = [14, 15, 16, 17]
vRI = [18, 19, 20, 21]; vRX = [22, 23, 24, 25]; vRY = [26, 27, 28, 29]
vTF, vL16, vHW, vHR, vCSW, vCSR, vAGR, vAGW, vFL, vSTR, vDS, vTAG = 30, 31, 32, 34, 36, 37, 38, 39, 40, 41, 42, 43
TQ = 44; vRS = 0
SRE, SIM, FA, FB, RING, GRE, OF0, OF1, CSA, XAUG, WAUG, SEL = 48, 64, 80, 96, 112, 144, 160, 168, 176, 184, [188, 192], 196
pL, pL8, pL16, pL32, pC2, pQ, pPRE, pPIM, pV0, pV1 = 200, 202, 204, 206, 208, 210, 226, 228, 230, 232
pT, pT2, pW, pCRE, pCIM, pKRE, pKIM, pS = 234, 236, 238, 246, 248, 250, 252, 254
LBK = pW
vLB = [6, 7]
vT2 = [22, 23]; vT2E = [28, 29]; vPF, vHZ, vOUT, vXB = 24, 25, 26, 27
vRCD = [18, 19, 20, 21]; vRCA = [10, 11, 12, 13]
bX, bM, bR, bT = 200, 216, 232, 248
SND, RCV = 80, 160
XA, F0R, F1R, SR = 0, 128, 184, 0
F2R = ['a112', 'a120', 'a240', 'v184', 'v192', 'v104']
XI = 0x4000
sGL, sXI = 's33', 's79'
vCK = [6, 7, 8, 9]
def rr(b, o, c=4): return f"{b[0]}[{int(b[1:])+o}:{int(b[1:])+o+c-1}]"
XLOC = [RD, RD + 4096, RE, RE + 4096, RC, RD, RD + 4096, RC]

def v(n, c=1): return f"v{n}" if c == 1 else f"v[{n}:{n+c-1}]"
def a(n, c=1): return f"a{n}" if c == 1 else f"a[{n}:{n+c-1}]"
def P(n): return f"v[{n}:{n+1}]"

class Mk:
    def __init__(self, kind, name=None, d=0): self.kind = kind; self.name = name; self.d = d
class Grp:
    kind = "grp"
    def __init__(self, items): self.items = items
class LW(Wait):
    def __init__(self, fn): self.fn = fn; self.toks = None
def flat(x):
    if isinstance(x, (list, tuple)): return [z for y in x for z in flat(y)]
    return [x]
class Pg(Prog):
    def slot(self, d=0, adv=0): self.items.append(Mk("slot", adv, d))
    def pos(self, n): self.items.append(Mk("pos", n))
    def flush(self, n): self.items.append(Mk("flush", n))
    def after(self, n, d=0): self.items.append(Mk("after", n, d))
    def mark(self, n): self.items.append(Mk("mark", n))
    def pad(self): self.items.append(Mk("pad"))
    def need(self, n): self.items.append(Mk("need", n))
    def gap(self, d): self.items.append(Mk("gap", None, d))
    def lw(self, fn): self.items.append(LW(fn))
    def grp(self, text):
        q = Prog(); r = [q(l) for l in text.split("\n") if l.strip()]; self.items.append(Grp(q.items)); return r
def cost(it):
    if it.kind == "grp": return sum(cost(x) for x in it.items)
    if it.kind in ("label", "raw", "slot", "pos", "flush", "after", "mark", "pad", "need", "gap"): return 0
    return 1
def vw(it):
    if it.kind != "vmem" or "store" in it.op: return 0
    if "a255" in it.text: return 4
    return 1 if "x4" in it.op else 0.25
def weave(main, qs, cap=7, cap16=3, gap=0, verbose=False):
    out = []; n = -1; xn = 0; debt = 0; seen = {}; marks = set(); t = 0
    fi = [0, 0]; st = dict(gap=gap, nxt=-1e9)
    where = {f.name: k for k in (0, 1) for f in qs[k] if f.kind == "mark"}
    idx_m = [i for i, it in enumerate(main) if it.kind == "mfma"]
    def force(name):
        c = 0; k = where[name]
        while name not in marks:
            f = qs[k][fi[k]]
            if f.kind == "need":
                if f.name not in marks: c += force(f.name)
            fi[k] += 1
            if f.kind == "mark": marks.add(f.name)
            elif f.kind == "after": assert f.name in seen, f"flush {name} passes after({f.name})"
            elif f.kind == "gap": st["gap"] = f.d
            elif f.kind not in ("pad", "need"):
                out.append(f); c += cost(f)
                if k and vw(f): st["nxt"] = max(st["nxt"], t) + vw(f) * st["gap"]
        return c
    for i, it in enumerate(main):
        if it.kind == "mfma": n += 1; t += 16 if "16x16" in it.op else 32
        if it.kind == "pos":
            seen[it.name] = n + xn
            if verbose: print(f"  pos {it.name} at mfma {n}, fill index {fi[0]}/{len(qs[0])} {fi[1]}/{len(qs[1])}")
            continue
        if it.kind == "flush":
            c = force(it.name)
            if verbose and c: print(f"  flush {it.name} at mfma {n}: forced {c}")
            continue
        if it.kind != "slot":
            out.append(it); continue
        lo = idx_m[n] if n >= 0 else -1
        hi = idx_m[n + 1] if n + 1 < len(idx_m) else len(main)
        own = sum(cost(x) for x in main[lo + 1: hi])
        b = (cap16 if (n >= 0 and "16x16" in main[lo].op) else cap) - own - debt
        debt = 0
        if it.d: b = it.d; t += 32 * it.name; xn += it.name
        for k in ((1,) if it.d else (1, 0)):
            q = qs[k]
            while b > 0 and fi[k] < len(q):
                f = q[fi[k]]
                if f.kind == "after":
                    if f.name not in seen or seen[f.name] + f.d > n + xn: break
                elif f.kind == "need":
                    if f.name not in marks: break
                elif k and vw(f) and t < st["nxt"]: break
                fi[k] += 1
                if f.kind == "mark":
                    marks.add(f.name)
                    if verbose > 1: print(f"    mark {f.name} at mfma {n}")
                elif f.kind == "gap": st["gap"] = f.d
                elif f.kind == "pad": break
                elif f.kind not in ("after", "need"):
                    out.append(f); b -= cost(f)
                    if k and vw(f): st["nxt"] = max(st["nxt"], t - st["gap"]) + vw(f) * st["gap"]
        if b < 0: debt = min(-b, 4)
    for k in (0, 1): assert all(cost(f) == 0 for f in qs[k][fi[k]:]), "fill left over"
    res = []
    for it in out:
        if it.kind == "grp": res += it.items
        else: res.append(it)
    for it in res:
        if isinstance(it, LW): it.toks = flat(it.fn())
    return res

class Gen:
    NST = 11
    def __init__(self, stamps=False, kname=None, **opt):
        self.p = Pg(); self.stamps = stamps; self.nst = 0; self.opt = opt
        self.kname = kname or NAME + "_kernel"
        self.stn = []
        self.hs = opt.get("hs", 2)
        self.hl = ["", " sc1"][opt.get("hl", 1)]
        self.pzm = opt.get("pzm", 15) if self.hs >= 3 else 0
        self.ool = []; self.tmk = []
        self.stsel = str(opt.get("st", "start+st+B1+ssm+B3+BF1+BF2+BE+BW+mend")).split("+")
    def stamp(self, name, p=None):
        if self.stamps and name in self.stsel:
            assert self.nst < 10
            (p or self.p)(f"s_memtime s[{82+2*self.nst}:{83+2*self.nst}]"); self.nst += 1; self.stn.append(name)
    def cmul(self, p, z, x, y):
        assert z != x and z != y
        p(f"v_mul_f32 v{z}, v{x}, v{y}\nv_mul_f32 v{z+1}, v{x}, v{y+1}\nv_fma_f32 v{z}, -v{x+1}, v{y+1}, v{z}\nv_fma_f32 v{z+1}, v{x+1}, v{y}, v{z+1}")
    def cfma(self, p, z, x, y, c):
        assert z != x and z != y
        p(f"v_fma_f32 v{z}, v{x}, v{y}, v{c}\nv_fma_f32 v{z+1}, v{x}, v{y+1}, v{c+1}\nv_fma_f32 v{z}, -v{x+1}, v{y+1}, v{z}\nv_fma_f32 v{z+1}, v{x+1}, v{y}, v{z+1}")
    def bf16r(self, p, d, s):
        p(f"v_cvt_pk_bf16_f32 v{d}, v{s}, v{s}\nv_and_b32 v{d}, 0xffff0000, v{d}")
    def srd(self, r, lo, hi, n):
        b = int(r[2:r.index(":")])
        self.p(f"s_mov_b32 s{b}, {lo}\ns_mov_b32 s{b+1}, {hi}\ns_mov_b32 s{b+2}, {n}\ns_mov_b32 s{b+3}, 0x20000")
    def dma4(self, p, vregs, srd, soff, m0expr, n=4):
        p(m0expr)
        return [p(f"buffer_load_dwordx4 v{vregs[g]}, {srd}, {soff} offen" + (f" offset:{g*1024}" if g else "") + " lds") for g in range(n)]
    def poll(self, p, loads, checks, pre):
        p.wait(pre)
        q = Prog()
        for c in checks: q(c)
        self.nl = getattr(self, "nl", 0) + 1
        d, r = f"Ldone{self.nl}", f"Lretry{self.nl}"
        q(f"s_cbranch_scc0 {d}")
        q.raw(f"{r}:\ns_cmp_eq_u32 {sBUD}, 0\ns_cbranch_scc1 {d}\ns_sub_u32 {sBUD}, {sBUD}, 1\n" + "\n".join(loads) + "\ns_waitcnt vmcnt(0)\n" + "\n".join(checks) + f"\ns_cbranch_scc1 {r}")
        q(f"{d}:")
        p.items.append(Grp(q.items))
    def hstore(self, p, text, last=None):
        if self.hs not in (2, 4): return p(text + ["", " sc1", "", " sc1"][self.hs])
        self.nl = getattr(self, "nl", 0) + 1
        g, e = f"Lgl{self.nl}", f"Lge{self.nl}"
        r = p.grp(f"s_cmp_lg_u32 {sGL}, 0\ns_cbranch_scc1 {g}\n{text}{['', ' nt', ' sc0', ' sc0 nt'][self.opt.get('hss', 0)]}\n{e}:")
        fl = ""
        if last is not None and self.hs == 4 and self.pzm >> last & 1:
            fl = f"s_waitcnt vmcnt(0)\nbuffer_store_dword v{vTAG}, off, {RWS}, {sFLW} offset:{32*last} sc1\n"
        self.ool.append(f"{g}:\n{text} sc1\n{fl}s_branch {e}")
        return r[2]
    def fbpoll(self, p, k):
        mask = (0x3F if k == 2 else 0xFF) << (8 * k)
        p.grp(f"s_cmp_lg_u32 {sGL}, 0\ns_cbranch_scc1 Lfb{k}\nLfr{k}:")
        self.ool.append(f"Lfb{k}:\nbuffer_load_dword v{vPF}, v{vFL}, {RWS}, 0 offen sc1\ns_waitcnt vmcnt(0)\nv_cmp_ne_u32 vcc, {sTAG}, v{vPF}\ns_and_b32 s31, vcc_lo, {mask:#x}\n"
                        f"s_cbranch_scc0 Lfr{k}\ns_cmp_eq_u32 {sBUD}, 0\ns_cbranch_scc1 Lfr{k}\ns_sub_u32 {sBUD}, {sBUD}, 1\ns_branch Lfb{k}")
    def sched(self, q, string, tab):
        for it in string.split(","):
            nm = it
            if "@" in it:
                nm, rest = it.split("@"); ps, d = (rest.split("+") + ["0"])[:2]
                if ps.startswith("t_"): q.need(ps)
                else: q.after(ps, int(d))
            if nm[0] == "g" and nm[1:].isdigit(): q.gap(int(nm[1:]))
            elif nm[0] == "T": self.touch(q, nm[1:], OF1, OF1 + 1); self.tmk.append(nm)
            else: tab[nm]()
            self.stamp("t_" + nm, q)
            q.mark("t_" + nm)
    def xdma(self, p, i):
        p(f"s_xor_b32 s34, {sXX}, {128*i}")
        self.tx[i] = self.dma4(p, vX, RX, "s34", f"s_add_u32 m0, {sW8}, {XLOC[i]}")
    def wsdma(self, p, i, c):
        self.tws[(i, c)] = self.dma4(p, vI, (RBRE, RBIM)[c], f"s{30+i}", f"s_add_u32 m0, {sW8}, {(RA, RB)[c] + 4096*i}")
    def fdma(self, p, k, i):
        so = sF[i]
        if k: so = "s34"; p(f"s_add_u32 s34, {sF[i]}, {512 if k == 1 else sF2}")
        self.tF[(k, i)] = self.dma4(p, vF, RW1, so, f"s_add_u32 m0, {sW8}, {(RE, RD, RA)[k] + 4096*i}")
    def w2dma(self, p, k):
        tk = []
        for e in range(2):
            p(f"s_xor_b32 s34, {sWX}, {(e << 15) | (k << 18)}")
            tk += self.dma4(p, vW, RW2, "s34", f"s_add_u32 m0, {sW8}, {(RB, RE)[k] + 4096*e}")
        self.tW[k] = tk
    def w2dma2(self, p):
        p(f"""s_mul_i32 s34, {sW}, {48*1024}
              s_add_u32 s34, s34, {16*32768}
              s_mul_i32 s35, {sW}, 6144""")
        tk = self.dma4(p, vW, RW2, "s34", f"s_add_u32 m0, s35, {RC}", n=2)
        p(f"s_add_u32 s34, s34, {16*1024}\ns_lshl_b32 s3, {sC}, 15\ns_sub_u32 s3, {(1376-32)*1024 - 22*32768 + 32768}, s3\ns_min_u32 s34, s34, s3")
        tk += self.dma4(p, vW, RW2, "s34", f"s_add_u32 m0, s35, {RC + 2048}")
        self.tW[2] = tk
    def cdma(self, p, half):
        tk = []
        p(f"s_xor_b32 s34, {sCX}, {32768 + 256*half}")
        tk += self.dma4(p, vI, RCC, "s34", f"s_add_u32 m0, {sW8}, {(RD, RA)[half]}")
        if half: p(f"s_xor_b32 s34, {sCX}, 256")
        tk += self.dma4(p, vI, RCC, "s34" if half else sCX, f"s_add_u32 m0, {sW8}, {(RD, RA)[half] + 4096}")
        self.tC[half] = tk
    def touch(self, p, what, t0, t1):
        sN = "s35"
        if what not in "hi": p(f"s_and_b32 s35, {sRB}, 3\ns_lshl_b32 s35, s35, 3\ns_add_u32 s35, s35, {sQ}\ns_lshl_b32 s35, s35, 2\ns_add_u32 s35, s35, {sW}")
        if what == "h":
            p(f"""v_lshlrev_b32 v{t0}, 7, v1
                  s_lshl_b32 s34, {sQ}, 11
                  s_sub_u32 s35, {32768 - 4096}, s34
                  v_bfe_u32 v{t1}, v1, 4, 1
                  v_mul_u32_u24 v{t1}, {16384 - 2048}, v{t1}
                  v_add_u32 v{t1}, s35, v{t1}
                  v_cndmask_b32 v{t1}, 0, v{t1}, {MH}
                  v_add_u32 v{t0}, v{t0}, v{t1}
                  s_lshl_b32 s34, s34, 1
                  s_add_u32 s34, s34, {sHB}""")
            p(f"buffer_load_dword a255, v{t0}, {RWS}, s34 offen")
        elif what == "i":
            p(f"""v_and_b32 v{t0}, 15, v1
                  v_lshlrev_b32 v{t0}, 7, v{t0}
                  s_lshl_b32 s34, {sQ}, 11
                  s_add_u32 s34, s34, {sHB}
                  s_add_u32 s34, s34, {HK[2]}
                  v_add_u32 v{t0}, s34, v{t0}
                  v_cndmask_b32 v{t0}, v{t0}, v{vFL}, {MH}""")
            p(f"buffer_load_dword a255, v{t0}, {RWS}, 0 offen")
        elif what[0] == "f":
            k0, cnt = int(what[1]), int(what[2])
            p(f"""v_bfe_u32 v{t0}, v1, 3, 2
                  v_lshl_add_u32 v{t0}, {sN}, 2, v{t0}
                  v_mul_u32_u24 v{t0}, 2752, v{t0}
                  v_and_b32 v{t1}, 7, v1
                  v_lshl_add_u32 v{t0}, v{t1}, 6, v{t0}""")
            if cnt == 2: p(f"v_lshrrev_b32 v{t1}, 5, v1\nv_lshl_add_u32 v{t0}, v{t1}, 9, v{t0}")
            p(f"s_mul_i32 s34, {sC}, {22*64}\ns_add_u32 s34, s34, {512*k0}")
            p(f"buffer_load_dword a255, v{t0}, {RW1}, s34 offen")
        elif what[0] == "w":
            k0, cnt = int(what[1]), int(what[2])
            p(f"""v_bfe_u32 v{t0}, v1, 3, 1
                  v_lshl_add_u32 v{t0}, {sN}, 1, v{t0}
                  v_lshlrev_b32 v{t0}, 10, v{t0}
                  v_and_b32 v{t1}, 7, v1
                  v_lshl_add_u32 v{t0}, v{t1}, 7, v{t0}
                  v_lshrrev_b32 v{t1}, 4, v1
                  v_min_u32 v{t1}, {cnt-1}, v{t1}
                  v_lshl_add_u32 v{t0}, v{t1}, 18, v{t0}""")
            p(f"s_mul_i32 s34, {sC}, {22*32768}\ns_add_u32 s34, s34, {8*32768*k0}")
            p(f"buffer_load_dword a255, v{t0}, {RW2}, s34 offen")
        elif what == "c":
            p(f"""s_lshr_b32 s34, {sN}, 1
                  v_bfe_u32 v{t0}, v1, 2, 3
                  v_lshl_add_u32 v{t0}, s34, 3, v{t0}
                  v_lshlrev_b32 v{t0}, 10, v{t0}
                  v_and_b32 v{t1}, 3, v1
                  v_lshl_add_u32 v{t0}, v{t1}, 7, v{t0}
                  s_lshl_b32 s34, {sC}, 9""")
            p(f"buffer_load_dword a255, v{t0}, {RCC}, s34 offen")
    def poison(self, p):
        Z = GRE + 8
        self.tpz = []; sc = " sc1" if self.hs == 3 else ["", " nt", " sc0", " sc0 nt", " sc1"][self.opt.get("pzs", 0)]
        if self.pzm & 8:
            p(f"s_lshl_b32 s34, {sQ}, 12\ns_add_u32 s34, s34, {sHB}")
            self.tpz = [p(f"buffer_store_dwordx4 {v(Z,4)}, v{vL16}, {RWS}, s34 offen offset:{1024*j}{sc}") for j in range(4)]
        for k in (2, 1, 0):
            if self.pzm >> k & 1:
                p(f"s_lshl_b32 s34, {sQ}, 11\ns_add_u32 s34, s34, {sHB}\ns_add_u32 s34, s34, {HK[k]}")
                self.tpz += [p(f"buffer_store_dwordx4 {v(Z,4)}, v{vL16}, {RWS}, s34 offen offset:{1024*j}{sc}") for j in range(2)]
    def pzrec(self, p):
        if self.hs == 4:
            p(f"s_getreg_b32 {sXI}, hwreg(HW_REG_XCC_ID, 0, 4)\ns_lshl_b32 {sXI}, {sXI}, 28\ns_xor_b32 {sXI}, {sXI}, {sTAG}\ns_add_u32 s22, {sFLW}, {XI}\nv_mov_b32 v{OF1+4}, {sXI}")
            p.lw(lambda: self.tpz)
            p(f"buffer_store_dword v{OF1+4}, off, {RWS}, s22 sc1")
            return
        p.lw(lambda: self.tpz)
        p(f"buffer_store_dword v{vTAG}, off, {RWS}, {sFLW} offset:96 sc1")
    def hcheck(self, m, k, n):
        if k == 3: regs = [f"a{SR + (n-1)*16 + 4*j + 3}" for j in range(4)]
        elif k == 2: regs = [F2R[n][0] + str(int(F2R[n][1:]) + 4*e + 3) for e in range(2)]
        else: regs = [f"a{(F0R, F1R)[k] + (n-1)*8 + 4*e + 3}" for e in range(2)]
        q = Prog(); L = f"{k}_{n}"
        q(f"Lck{L}:")
        vs = []
        for j, r in enumerate(regs):
            if r[0] == "a": q(f"v_accvgpr_read_b32 v{vCK[j]}, {r}"); vs.append(f"v{vCK[j]}")
            else: vs.append(r)
        if len(vs) == 4: q(f"v_max3_u32 v{vCK[0]}, {vs[0]}, {vs[1]}, {vs[2]}"); vs = [f"v{vCK[0]}", vs[3]]
        q(f"v_max_u32 v{vCK[0]}, {vs[0]}, {vs[1]}\nv_cmp_eq_u32 vcc, -1, v{vCK[0]}\ns_cbranch_vccnz Lsl{L}\nLok{L}:")
        m.items += q.items
        base = {3: f"s_lshl_b32 s78, {sQ}, 12\ns_add_u32 s78, s78, {sHB}", 2: f"s_add_u32 s78, {sHB}, {HK[2]}"}.get(k,
               f"s_lshl_b32 s78, {sQ}, 11\ns_add_u32 s78, s78, {sHB}\ns_add_u32 s78, s78, {HK[k]}")
        self.ool.append(f"Lsl{L}:\ns_cmp_eq_u32 {sBUD}, 0\ns_cbranch_scc1 Lok{L}\ns_sub_u32 {sBUD}, {sBUD}, {1 << (4*k) if self.opt.get('cnt') else 1}\n{base}\ns_call_b64 s[0:1], Lch{L}\ns_branch Lck{L}")
    def hchains(self):
        for k in range(4):
            if not self.pzm >> k & 1: continue
            t = []
            for n in (range(6) if k == 2 else range(1, 8)):
                t.append(f"Lch{k}_{n}:")
                if k == 2:
                    t.append(f"s_add_u32 s79, s78, {2048*n}")
                    t += [f"buffer_load_dwordx4 {rr(F2R[n], 4*e)}, v{vHZ if n == 5 else vL16}, {RWS}, s79 offen offset:{1024*e} sc1" for e in range(2)]
                elif k == 3:
                    t.append(f"s_xor_b32 s79, s78, {n << 12}")
                    t += [f"buffer_load_dwordx4 {a(SR + (n-1)*16 + 4*j, 4)}, v{vL16}, {RWS}, s79 offen offset:{1024*j} sc1" for j in range(4)]
                else:
                    t.append(f"s_xor_b32 s79, s78, {n << 11}")
                    t += [f"buffer_load_dwordx4 {a((F0R, F1R)[k] + (n-1)*8 + 4*e, 4)}, v{vL16}, {RWS}, s79 offen offset:{1024*e} sc1" for e in range(2)]
            t.append("s_waitcnt vmcnt(0)\ns_setpc_b64 s[0:1]")
            self.ool.append("\n".join(t))
    def touches(self, p, key, t0, t1):
        s = str(self.opt.get(key, ""))
        for w in [x for x in s.split("+") if x and x != "0"]: self.touch(p, w, t0, t1)

    def prologue(self):
        p = self.p; t = [FA + i for i in range(16)]
        p("s_cmp_ge_u32 s2, 0x100\ns_cbranch_scc1 L_END")
        p("s_load_dwordx16 s[4:19], s[0:1], 0\ns_load_dwordx8 s[20:27], s[0:1], 64\ns_load_dwordx4 s[28:31], s[0:1], 96\ns_load_dwordx2 s[32:33], s[0:1], 112")
        if self.stamps or self.opt.get("spinexp"): p("s_memrealtime s[80:81]")
        self.stamp("start")
        p(f"v_and_b32 v1, 63, v0\nv_lshrrev_b32 v{t[0]}, 6, v0\ns_and_b32 s3, s2, 7\ns_lshr_b32 {sN}, s2, 3\nv_readfirstlane_b32 {sW}, v{t[0]}")
        p(f"""s_lshr_b32 {sRB}, s3, 1
              s_lshl_b32 {sRB}, {sRB}, 2
              s_lshr_b32 s35, {sN}, 3
              s_add_u32 {sRB}, {sRB}, s35
              s_and_b32 {sC}, s3, 1
              s_and_b32 {sQ}, {sN}, 7
              s_add_u32 {sC0}, {sQ}, s35
              s_lshl_b32 {sCG}, {sC}, 3
              s_add_u32 {sCG}, {sCG}, {sQ}
              s_lshl_b32 {sN}, {sN}, 2
              s_add_u32 {sN}, {sN}, {sW}
              s_lshl_b32 {sRG}, {sRB}, 2
              s_add_u32 {sRG}, {sRG}, {sW}
              s_lshl_b32 {sW8}, {sW}, 13
              s_mov_b32 {sBUD}, 0x10000""")
        p(f"s_getpc_b64 s[34:35]\nL_PC:\nv_lshlrev_b32 v{t[0]}, 7, v1\nv_add_u32 v{t[0]}, {sN}, v{t[0]}\nv_lshlrev_b32 v{t[0]}, 7, v{t[0]}\nv_min_u32 v{t[0]}, L_END-L_PC, v{t[0]}")
        p(f"global_load_dword a254, v{t[0]}, s[34:35]")
        p(f"""v_and_b32 v{t[1]}, 31, v1
              v_lshrrev_b32 v{t[2]}, 5, v1
              s_lshl_b32 s3, {sRB}, 7
              s_lshl_b32 s34, {sCG}, 3
              s_add_u32 s3, s3, s34
              s_lshl_b32 s34, {sW}, 1
              s_add_u32 s79, s3, s34
              v_add_u32 v{t[5]}, s79, v{t[2]}
              v_lshlrev_b32 v{t[6]}, 10, v{t[5]}
              v_lshl_add_u32 v{t[6]}, v{t[1]}, 4, v{t[6]}
              s_lshl_b32 s3, {sCG}, 6
              v_lshl_add_u32 v{t[7]}, v{t[1]}, 1, s3""")
        p(f"""v_lshrrev_b32 v{t[3]}, 3, v1
              v_and_b32 v{t[4]}, 7, v1
              v_lshrrev_b32 v{t[8]}, 4, v1
              v_xor_b32 v{t[4]}, v{t[8]}, v{t[4]}
              v_lshlrev_b32 v{t[4]}, 4, v{t[4]}
              v_lshl_add_u32 v{vI[0]}, v{t[3]}, 10, v{t[4]}
              v_xor_b32 v{vI[1]}, 64, v{vI[0]}
              v_add_u32 v{vI[2]}, {7168*2}, v{vI[0]}
              v_add_u32 v{vI[3]}, {7168*3}, v{vI[1]}
              v_add_u32 v{vI[1]}, 7168, v{vI[1]}""")
        p(f"""v_lshlrev_b32 v{t[9]}, 4, v{t[2]}
              v_and_b32 v{t[10]}, 8, v1
              v_bfe_u32 v{t[11]}, v1, 4, 1
              v_or3_b32 v{t[9]}, v{t[9]}, v{t[10]}, v{t[11]}
              v_lshl_add_u32 v{vX[0]}, v{t[9]}, 10, v{t[4]}
              v_xor_b32 v{vX[1]}, 64, v{vX[0]}
              v_add_u32 v{vX[2]}, 2048, v{vX[0]}
              v_add_u32 v{vX[3]}, 3072, v{vX[1]}
              v_add_u32 v{vX[1]}, 1024, v{vX[1]}""")
        p("s_waitcnt lgkmcnt(0)")
        self.stamp("karg")
        if self.opt.get("dbg"): p("s_mov_b64 s[100:101], s[30:31]")
        if self.opt.get("wsb"):
            assert (self.opt["wsb"] << 20) + WS_SIZE <= 256 << 20
            p(f"s_add_u32 s32, s32, {self.opt['wsb'] << 20}\ns_addc_u32 s33, s33, 0")
        self.tst = [p(f"global_load_dwordx4 v[{GRE}:{GRE+3}], v{t[6]}, s[4:5]"),
                    p(f"global_load_dwordx4 v[{GRE+4}:{GRE+7}], v{t[6]}, s[4:5] offset:512")]
        p(f"s_add_u32 s34, s32, {GOFF}\ns_addc_u32 s35, s33, 0\ns_load_dword {sTAG}, s[34:35], 0")
        self.srd(RBRE, "s10", "s11", 524288); self.srd(RBIM, "s12", "s13", 524288); self.srd(RX, "s4", "s5", 2048*1024)
        self.tpar = [p(f"global_load_ushort v{pT}, v{t[7]}, s[6:7]"),
                     p(f"global_load_ushort v{pT+1}, v{t[7]}, s[8:9]"),
                     p(f"global_load_ushort v{pT2}, v{t[7]}, s[18:19]")]
        p(f"""s_lshl_b32 {sXO}, {sRG}, 15
              s_and_b32 {sC0}, {sC0}, 7
              s_lshl_b32 s3, {sW}, 1
              s_xor_b32 {sC0}, {sC0}, s3
              s_lshl_b32 s3, {sC0}, 7
              s_add_u32 {sXX}, {sXO}, s3
              s_lshl_b32 s30, {sCG}, 15
              s_add_u32 s30, s30, s3
              s_xor_b32 s31, s30, 128""")
        self.tx = {}; self.tws = {}; self.tF = {}; self.tW = {}; self.tC = {}
        self.wsdma(p, 0, 0); self.wsdma(p, 0, 1); self.xdma(p, 0)
        self.srd(RW1, "s24", "s25", 512 * 2752); self.srd(RW2, "s26", "s27", 1376 * 1024)
        self.srd(RWS, "s32", "s33", WS_SIZE); self.srd(ROUT, "s28", "s29", 2048 * 512 * 4)
        p(f"s_bitcmp1_b32 {sW}, 0\ns_cselect_b32 s48, s16, s14\ns_cselect_b32 s49, s17, s15\ns_mov_b32 s50, 524288\ns_mov_b32 s51, 0x20000")
        self.touches(p, "t1", t[12], t[13])
        p(f"s_lshl_b32 s3, {sQ}, 7\ns_lshl_b32 s34, {sC}, 6\ns_add_u32 s3, s3, s34\nv_lshl_add_u32 v{t[12]}, v{t[1]}, 1, s3")
        self.tds = p(f"global_load_ushort v{vDS}, v{t[12]}, s[20:21]")
        p(f"""s_mul_i32 s34, {sC}, 22
              s_add_u32 s34, s34, {sQ}
              s_mul_i32 s35, {sC}, 21
              s_add_u32 s35, s35, 5
              s_min_u32 s35, s35, s34
              s_sub_u32 s35, s35, s34
              s_lshl_b32 s35, s35, 6
              s_add_u32 {sF2}, s35, 1024
              s_lshl_b32 s34, s34, 6
              s_mul_i32 {sF[0]}, {sC0}, {64*2752}
              s_xor_b32 s35, {sC0}, 1
              s_mul_i32 {sF[1]}, s35, {64*2752}
              s_add_u32 {sF[0]}, {sF[0]}, s34
              s_add_u32 {sF[1]}, {sF[1]}, s34
              s_lshl_b32 s34, {sW}, 1
              s_xor_b32 s34, s34, {sQ}
              s_lshl_b32 {sWX}, s34, 15
              s_lshr_b32 s34, {sQ}, 1
              s_lshr_b32 s35, {sW}, 1
              s_xor_b32 s34, s34, s35
              s_lshl_b32 s34, s34, 7
              s_lshl_b32 s35, {sQ}, 16
              s_add_u32 s34, s34, s35
              s_mul_i32 s35, {sC}, {32768 + 512}
              s_add_u32 {sCX}, s34, s35""")
        p(f"""s_lshl_b32 s3, {sRG}, 1
              s_add_u32 s3, s3, {sC}
              s_mul_i32 {sHB}, s3, {HSZ}
              s_add_u32 {sHB}, {sHB}, {HOFF}
              s_lshl_b32 s3, s3, 7
              s_add_u32 s3, s3, {FL}
              v_lshl_add_u32 v{vFL}, v{t[1]}, 2, s3
              s_lshl_b32 s34, {sQ}, 2
              s_add_u32 {sFLW}, s3, s34
              s_mov_b32 s10, 0
              s_mov_b32 s11, -1
              s_mov_b32 s8, 0xffff0000
              s_mov_b32 s9, 0xffff0000
              s_bitcmp1_b32 {sW}, 0
              s_cselect_b64 {MW0}, -1, 0
              s_bitcmp1_b32 {sW}, 1
              s_cselect_b64 {MW1}, -1, 0""")
        p(f"v_lshlrev_b32 v{vL16}, 4, v1")
        if self.hs >= 3:
            for e in range(4): p(f"v_mov_b32 v{GRE+8+e}, -1")
            if self.opt.get("pz", 0) == 1: self.poison(p)
        self.touches(p, "t2", t[12], t[13])
        p(f"""v_lshrrev_b32 v{t[8]}, 2, v1
              v_mul_u32_u24 v{t[8]}, 2752, v{t[8]}
              v_and_b32 v{t[9]}, 3, v1
              v_lshl_add_u32 v{vF[0]}, v{t[9]}, 4, v{t[8]}
              v_add_u32 v{vF[1]}, {43008}, v{vF[0]}
              v_add_u32 v{vF[2]}, {43008*2}, v{vF[0]}
              v_add_u32 v{vF[3]}, {43008*3}, v{vF[0]}""")
        p(f"""v_bfe_u32 v{t[10]}, v1, 2, 2
              v_bfe_u32 v{t[12]}, v1, 1, 3
              v_xor_b32 v{t[12]}, v{t[12]}, v{t[2]}
              v_lshlrev_b32 v{vRI[0]}, 7, v{t[1]}
              v_lshl_add_u32 v{vRI[0]}, v{t[12]}, 4, v{vRI[0]}
              v_add_u32 v{vRI[0]}, {sW8}, v{vRI[0]}
              v_xor_b32 v{vRI[1]}, 32, v{vRI[0]}
              v_xor_b32 v{vRI[2]}, 64, v{vRI[0]}
              v_xor_b32 v{vRI[3]}, 96, v{vRI[0]}""")
        for q in range(4): p(f"v_add_u32 v{vRX[q]}, {RD}, v{vRI[q]}\nv_add_u32 v{vRY[q]}, {RC}, v{vRI[q]}")
        p(f"""s_add_u32 s3, {sW8}, {RC}
              v_lshlrev_b32 v{vHW}, 6, v{t[1]}
              v_lshl_add_u32 v{vHW}, v{t[12]}, 3, v{vHW}
              v_add_u32 v{vHW}, s3, v{vHW}
              v_lshl_add_u32 v{t[13]}, v{t[2]}, 3, v{t[10]}""")
        p(f"""v_and_b32 v{t[14]}, 1, v1
              v_bfe_u32 v{t[15]}, v1, 1, 1
              v_lshl_add_u32 v{t[14]}, v{t[14]}, 1, v{t[15]}
              v_lshlrev_b32 v{t[14]}, 3, v{t[14]}
              v_lshl_add_u32 v{t[14]}, v{t[11]}, 5, v{t[14]}
              v_lshl_add_u32 v{vTF}, v{t[13]}, 6, v{t[14]}
              s_add_u32 s34, {sW8}, {RE}
              v_add_u32 v{vTF}, s34, v{vTF}""")
        p(f"""v_bfe_u32 v{t[15]}, v1, 3, 1
              v_lshl_add_u32 v{t[14]}, v{t[11]}, 2, v{t[9]}
              v_lshl_add_u32 v{t[15]}, v{t[2]}, 2, v{t[15]}
              v_xor_b32 v{t[14]}, v{t[14]}, v{t[15]}
              v_lshlrev_b32 v{t[14]}, 3, v{t[14]}
              v_lshl_add_u32 v{t[14]}, v{t[13]}, 6, v{t[14]}
              v_add_u32 v{vHR}, s3, v{t[14]}
              v_xor_b32 v{t[14]}, 16, v{t[14]}
              v_add_u32 v{t[14]}, 256, v{t[14]}
              v_add_u32 v{vHR+1}, s3, v{t[14]}""")
        p(f"""v_and_b32 v{t[14]}, 7, v1
              v_lshlrev_b32 v{t[15]}, 2, v{t[11]}
              v_xor_b32 v{t[14]}, v{t[14]}, v{t[15]}
              v_lshlrev_b32 v{t[14]}, 4, v{t[14]}
              v_lshl_add_u32 v{vW[0]}, v{t[3]}, 10, v{t[14]}
              s_mul_i32 s3, {sC}, {22*32768}
              s_lshl_b32 s34, {sQ}, 7
              s_add_u32 s3, s3, s34
              v_add_u32 v{vW[0]}, s3, v{vW[0]}
              v_add_u32 v{vW[1]}, 7168, v{vW[0]}
              v_add_u32 v{vW[2]}, {7168*2}, v{vW[0]}
              v_add_u32 v{vW[3]}, {7168*3}, v{vW[0]}""")
        p(f"""v_lshlrev_b32 v{vCSR}, 4, v{t[1]}
              v_add_u32 v{vCSR}, {CSX}, v{vCSR}
              s_lshl_b32 s3, {sW}, 2
              v_add_u32 v{vCSW}, s3, v{vCSR}
              v_lshlrev_b32 v{vAGR}, 3, v{t[1]}
              v_add_u32 v{vAGR}, {AGX}, v{vAGR}
              s_lshl_b32 s3, {sW}, 8
              v_add_u32 v{vAGW}, s3, v{vAGR}
              s_add_u32 s3, s3, {STX}
              v_lshl_add_u32 v{vSTR}, v{t[2]}, 4, s3""")
        p(f"""v_and_b32 v{t[14]}, 1, v1
              v_cmp_eq_u32 vcc, v{t[14]}, v{t[11]}
              v_mov_b32 v{t[15]}, 0x3f803f80
              v_cndmask_b32 v{SEL}, 0, v{t[15]}, vcc
              v_mov_b32 v{SEL+1}, v{SEL}
              v_mov_b32 v{SEL+2}, v{SEL}
              v_mov_b32 v{SEL+3}, v{SEL}""")
        for r in (XAUG, WAUG[0], WAUG[1]):
            for e in range(1, 4): p(f"v_mov_b32 v{r+e}, 0")
        p(f"""v_lshlrev_b32 v{FB}, 4, v{t[5]}
              v_bfe_u32 v{t[14]}, v1, 2, 1
              v_lshlrev_b32 v{t[14]}, 4, v{t[14]}
              v_and_b32 v{t[15]}, 1, v1
              v_lshl_add_u32 v{t[14]}, v{t[15]}, 3, v{t[14]}
              v_lshl_add_u32 v{t[14]}, v{t[11]}, 2, v{t[14]}
              v_bfe_u32 v{t[15]}, v1, 3, 1
              v_lshl_add_u32 v{t[14]}, v{t[15]}, 1, v{t[14]}
              v_bfe_u32 v{t[15]}, v1, 1, 1
              v_add_u32 v{t[14]}, v{t[15]}, v{t[14]}
              v_lshlrev_b32 v{FB+1}, 4, v{t[14]}
              v_lshl_add_u32 v{FB+2}, v{t[1]}, 2, s3""")

    def stats(self):
        p = self.p
        F = FA
        p.wait(self.tst)
        self.stamp("st")
        self.wsdma(p, 1, 0)
        self.touches(p, "t3", OF1, OF1 + 1)
        for n in range(8):
            p(f"v_lshlrev_b32 v{F+2*n}, 16, v{GRE+n}\nv_and_b32 v{F+2*n+1}, 0xffff0000, v{GRE+n}")
        A = OF0
        def red(x):
            p(f"v_add_f32 v{x}, v{x}, v{x+1}")
            for m in ("quad_perm:[1,0,3,2]", "quad_perm:[2,3,0,1]", "row_half_mirror", "row_mirror"):
                p(f"v_add_f32_dpp v{x}, v{x}, v{x} {m} row_mask:0xf bank_mask:0xf")
            p(f"v_mov_b32 v{x+1}, v{x}\nv_permlane16_swap_b32 v{x}, v{x+1}\nv_add_f32 v{x}, v{x}, v{x+1}")
        for n in range(4): p(f"v_pk_add_f32 {P(A+2*n)}, {P(F+4*n)}, {P(F+4*n+2)}")
        p(f"v_pk_add_f32 {P(A)}, {P(A)}, {P(A+2)}\nv_pk_add_f32 {P(A+4)}, {P(A+4)}, {P(A+6)}\nv_pk_add_f32 {P(A)}, {P(A)}, {P(A+4)}")
        red(A)
        p(f"v_mul_f32 v{A}, 0x3b000000, v{A}")
        self.wsdma(p, 1, 1)
        for n in range(8):
            p(f"v_pk_add_f32 {P(F+2*n)}, {P(F+2*n)}, {P(A)} op_sel_hi:[1,0] neg_lo:[0,1] neg_hi:[0,1]")
        p(f"v_pk_mul_f32 {P(A+2)}, {P(F)}, {P(F)}\nv_pk_mul_f32 {P(A+4)}, {P(F+2)}, {P(F+2)}")
        for n in range(2, 8):
            p(f"v_pk_fma_f32 {P(A+2+2*(n&1))}, {P(F+2*n)}, {P(F+2*n)}, {P(A+2+2*(n&1))}")
        p(f"v_pk_add_f32 {P(A+2)}, {P(A+2)}, {P(A+4)}")
        red(A + 2)
        p(f"v_mul_f32 v{A+2}, 0x3b000000, v{A+2}")
        p(f"v_cvt_pk_bf16_f32 v{A+4}, v{A}, v{A+2}\nv_lshlrev_b32 v{TQ}, 16, v{A+4}\nv_and_b32 v{A+5}, 0xffff0000, v{A+4}")
        p(f"v_add_f32 v{A+5}, 0x3727c5ac, v{A+5}")
        self.bf16r(p, A + 5, A + 5)
        p(f"v_sqrt_f32 v{A+5}, v{A+5}")
        self.bf16r(p, A + 5, A + 5)
        p(f"v_rcp_f32 v{TQ+2}, v{A+5}")
        p("s_waitcnt lgkmcnt(0)")
        p(f"s_mul_i32 {sTAG}, {sTAG}, 0x19660d\ns_add_u32 {sTAG}, {sTAG}, 0x3c6ef35f")
        p(f"v_mov_b32 v{vTAG}, {sTAG}\nv_mov_b32 v{TQ+1}, {sTAG}\nv_mov_b32 v{TQ+3}, {sTAG}")
        p("s_mov_b32 exec_lo, 1\ns_mov_b32 exec_hi, 1")
        self.tsts = p(f"buffer_store_dwordx4 v[{TQ}:{TQ+3}], v{FB}, {RWS}, 0 offen sc1")
        p("s_mov_b64 exec, -1")
        if self.hs == 2:
            p(f"s_getreg_b32 {sXI}, hwreg(HW_REG_XCC_ID, 0, 4)\ns_lshl_b32 {sXI}, {sXI}, 28\ns_xor_b32 {sXI}, {sXI}, {sTAG}\ns_add_u32 s34, {sFLW}, {XI}\nv_mov_b32 v{A}, {sXI}")
            p(f"buffer_store_dword v{A}, off, {RWS}, s34 sc1")
        self.xdma(p, 1)

    def params(self, p):
        p.wait(self.tpar)
        LOG2E = "0x3fb8aa3b"
        p(f"""v_lshlrev_b32 v{pT}, 16, v{pT}
              v_lshlrev_b32 v{pT+1}, 16, v{pT+1}
              v_lshlrev_b32 v{pT2}, 16, v{pT2}
              v_mul_f32 v{pT2}, {LOG2E}, v{pT2}
              v_exp_f32 v{pT2}, v{pT2}""")
        self.bf16r(p, pT2, pT2)
        p(f"""v_mul_f32 v{pW}, v{pT2}, v{pT}
              v_mul_f32 v{pW+1}, v{pT2}, v{pT+1}
              v_mul_f32 v{pW}, {LOG2E}, v{pW}
              v_mul_f32 v{pW+1}, 0.15915494, v{pW+1}
              v_exp_f32 v{pW}, v{pW}
              v_fract_f32 v{pW+1}, v{pW+1}
              v_cos_f32 v{pW+2}, v{pW+1}
              v_sin_f32 v{pW+3}, v{pW+1}
              v_mul_f32 v{pW+4}, v{pT}, v{pT}
              v_fma_f32 v{pW+4}, v{pT+1}, v{pT+1}, v{pW+4}
              v_mul_f32 v{pL}, v{pW}, v{pW+2}
              v_mul_f32 v{pL+1}, v{pW}, v{pW+3}
              v_rcp_f32 v{pW+4}, v{pW+4}
              v_add_f32 v{pW+5}, -1.0, v{pL}
              v_add_f32 v{pW+4}, v{pW+4}, v{pW+4}
              v_mul_f32 v{pC2}, v{pW+5}, v{pT}
              v_mul_f32 v{pC2+1}, v{pL+1}, v{pT}
              v_fma_f32 v{pC2}, v{pL+1}, v{pT+1}, v{pC2}
              v_fma_f32 v{pC2+1}, -v{pW+5}, v{pT+1}, v{pC2+1}
              v_mul_f32 v{pC2}, v{pC2}, v{pW+4}
              v_mul_f32 v{pC2+1}, v{pC2+1}, v{pW+4}""")
        self.cmul(p, pT, pL, pL); self.cmul(p, pT2, pT, pT); self.cmul(p, pL8, pT2, pT2); self.cmul(p, pL16, pL8, pL8); self.cmul(p, pL32, pL16, pL16)
    def params2(self, p):
        L64, L128 = pW, pW + 2
        self.cmul(p, L64, pL32, pL32); self.cmul(p, L128, L64, L64)
        for (dst, src, m) in ((pT, pL16, MH), (pT2, pL32, MW0), (pW + 4, L64, MW1)):
            p(f"v_cndmask_b32 v{dst}, 1.0, v{src}, {m}\nv_cndmask_b32 v{dst+1}, 0, v{src+1}, {m}")
        self.cmul(p, pW + 6, pT, pT2); self.cmul(p, pT, pW + 6, pW + 4)
        self.cmul(p, pT2, pT, pL8)
        p(f"v_mov_b32 v{pPRE}, v{pT}\nv_mov_b32 v{pPRE+1}, v{pT2}\nv_mov_b32 v{pPIM}, v{pT+1}\nv_mov_b32 v{pPIM+1}, v{pT2+1}")
        self.cmul(p, pT2, pT, pT); self.cmul(p, pT, pT2, pT2); self.cmul(p, pT2, pT, pT); self.cmul(p, pV0, pT2, pT2)
        self.cmul(p, pV1, pV0, L128)
        self.cmul(p, pQ, pC2, pL)
        for s in range(1, 8): self.cmul(p, pQ + 2*s, pQ + 2*s - 2, pL)

    def cs_write(self, p, tile, acc):
        p(f"v_cndmask_b32 v{acc}, v{acc}, v{acc+1}, {M16}")
        return p(f"ds_write_b32 v{vCSW}, v{acc} offset:{512*tile}")
    def cs_final(self, p, tile, dst):
        r = p(f"ds_read_b128 v[{TQ}:{TQ+3}], v{vCSR} offset:{512*tile}")
        p.pad()
        p.wait(r)
        p(f"""v_add_f32 v{TQ}, v{TQ}, v{TQ+1}
              v_add_f32 v{TQ+2}, v{TQ+2}, v{TQ+3}
              v_add_f32 v{TQ}, v{TQ}, v{TQ+2}
              v_cvt_pk_bf16_f32 v{TQ+1}, v{TQ}, v{TQ}
              v_and_b32 v{TQ+1}, 0xffff0000, v{TQ+1}
              v_sub_f32 v{TQ}, v{TQ}, v{TQ+1}
              v_cvt_pk_bf16_f32 v{dst}, v{TQ+1}, v{TQ}""")

    def ssm(self):
        m, f, g, o = self.m, self.f, self.g, self.opt
        rd = {}; xr = {}
        MF = "v_mfma_f32_32x32x16_bf16"; M16_ = "v_mfma_f32_16x16x32_bf16"
        def slot(ks, c): return RING + ((2*ks + c) % 8) * 4
        def issue_w(ks):
            if ks and ks % 8 == 0:
                for q in range(4): m(f"v_xor_b32 v{vRI[q]}, {0x6000 if ks == 16 else 0x2000}, v{vRI[q]}")
            for c in range(2):
                rd[(ks, c)] = m(f"ds_read_b128 {v(slot(ks,c),4)}, v{vRI[ks&3]} offset:{((ks>>2)&1)*4096 + c*RB}")
        def issue_x(i):
            if i > 2: m.flush(f"t_x{i}")
            self.stamp(f"y{i}", m); m.lw(lambda: self.tx[i]); self.stamp(f"x{i}", m)
            b, off = (vRY, 0) if XLOC[i] == RC else (vRX, XLOC[i] - RD)
            xr[i] = [m(f"ds_read_b128 {a(XA+16*i+4*q,4)}, v{b[q]} offset:{off}") for q in range(4)]
            m.pos(f"ix{i}")
        def mm(ks, c):
            m.wait(xr[ks >> 2][ks & 3], rd[(ks, c | o.get("w2", 1))])
            acc = v((SRE, SIM)[c], 16)
            m(f"{MF} {acc}, {a(XA+4*ks,4)}, {v(slot(ks,c),4)}, {acc if ks else 0}")
        def cs(ks, c):
            m.wait(rd[(ks, c)])
            acc = v(CSA + 4*c, 4)
            m(f"{M16_} {acc}, {v(SEL,4)}, {v(slot(ks,c),4)}, {acc if ks else 0}")
        m.wait(self.tws[(0, 0)], self.tws[(0, 1)])
        issue_x(0)
        for ks in range(4): issue_w(ks)
        self.stamp("c0", m); m.pos("c0")
        for ks in range(4):
            for c in range(2):
                mm(ks, c); m.slot(); cs(ks, c); m.slot()
        for nm in str(o.get("fc0", "t_x4")).split("+"): m.flush(nm)
        m.wait(self.tws[(1, 0)], self.tws[(1, 1)])
        issue_x(1)
        for ks in range(4, 8): issue_w(ks)
        m.pos("c1")
        for ks in (4, 5):
            for c in range(2):
                mm(ks, c); m.slot(); cs(ks, c); m.slot()
        for ks in (6, 7):
            for c in range(2): cs(ks, c); m.slot()
        mm(6, 0); m.slot(); mm(6, 1); m.slot()
        for nm in str(o.get("fc1", "t_x6")).split("+"): m.flush(nm)
        w = [self.cs_write(m, 0, CSA), self.cs_write(m, 1, CSA + 4)]
        m.wait(w); m("s_barrier"); self.stamp("B1", m); m.pos("B1")
        issue_w(8); issue_w(9); issue_x(2); issue_w(10)
        mm(7, 0); m.slot(); mm(7, 1); m.slot()
        for ks in range(8, 32):
            if ks % 4 == 3 and ks < 28: issue_x((ks >> 2) + 1)
            for c in range(2):
                mm(ks, c)
                if ks % 4 == 0 and c == 0: m.pos(f"x{ks>>2}")
                if c == 1 and ks + 3 < 32: issue_w(ks + 3)
                m.slot()
        stl = f"buffer_load_dwordx4 v[{TQ+4-4}:{TQ+3}], v{FB+1}, {RWS}, s29 offen sc1"
        def reuse(i, fn, *a_):
            def go():
                if i is not None: g.after(f"ix{i}"); g.lw(lambda: xr[i])
                fn(g, *a_)
            return go
        def t_stl():
            g.need("t_cfa"); g.need("t_cfb"); g(f"s_lshl_b32 s29, {sRG}, 9"); self.tstl = g(stl)
        def t_sp():
            f.need("t_stl"); self.stamp("sp0", f)
            f.lw(lambda: self.tstl)
            self.poll(f, [stl], [f"v_cmp_ne_u32 s[22:23], {sTAG}, v{TQ+1}", f"v_cmp_ne_u32 vcc, {sTAG}, v{TQ+3}", "s_or_b64 vcc, vcc, s[22:23]"], [])
            self.stamp("sp1", f)
            w = f(f"ds_write2_b32 v{FB+2}, v{TQ+2}, v{TQ} offset0:0 offset1:32")
            f(f"v_mov_b32 v{vRS}, v{TQ+2}\nv_cvt_pk_bf16_f32 v{XAUG}, -v{TQ}, -v{TQ}\nv_cndmask_b32 v{XAUG}, v{XAUG}, 0, {MH}")
            f.wait(w)
            self.trs = [f(f"ds_read_b128 {v(FB+4*j,4)}, v{vSTR} offset:{32*j}") for j in range(4)]
        def t_cf(k):
            f.after("B1"); self.cs_final(f, k, WAUG[k])
        xld = f"buffer_load_dword v{OF1+7}, v{vFL}, {RWS}, {'s28' if self.hs in (2, 4) else 0} offen sc1"
        def xl():
            if self.hs >= 3: g.need("t_pr")
            if self.hs in (2, 4): g(f"s_mov_b32 s28, {XI}"); self.txl = g(xld)
            if self.hs == 3: self.txl = g(xld)
        def xc():
            f.need("t_xl")
            if self.hs == 3:
                f.lw(lambda: self.txl)
                self.poll(f, [xld], [f"v_cmp_ne_u32 vcc, {sTAG}, v{OF1+7}", "s_and_b32 s33, vcc_lo, 0xff000000"], [])
            if self.hs in (2, 4):
                f.lw(lambda: self.txl)
                self.poll(f, [xld], [f"v_xor_b32 v{OF1+5}, {sXI}, v{OF1+7}", f"v_lshlrev_b32 v{OF1+6}, 4, v{OF1+5}", f"v_cmp_ne_u32 vcc, 0, v{OF1+6}", f"s_and_b32 {sGL}, vcc_lo, 0xff"], [])
                f.grp(f"v_cmp_ne_u32 vcc, 0, v{OF1+5}\ns_and_b32 {sGL}, vcc_lo, 0xff")
        def pr():
            if not o.get("pz", 0): f.need("t_pz")
            self.pzrec(f)
        self.xl, self.xc, self.pr = xl, xc, pr
        tb = dict(xl=xl, x3=reuse(None, self.xdma, 3), x4=reuse(None, self.xdma, 4), x5=reuse(0, self.xdma, 5), x6=reuse(1, self.xdma, 6), x7=reuse(4, self.xdma, 7),
                  f00=reuse(2, self.fdma, 0, 0), f01=reuse(3, self.fdma, 0, 1), f10=reuse(5, self.fdma, 1, 0), f11=reuse(6, self.fdma, 1, 1), stl=t_stl, pz=lambda: self.poison(g))
        ta = dict(par=lambda: self.params(f), par2=lambda: self.params2(f), cfa=lambda: t_cf(0), cfb=lambda: t_cf(1), sp=t_sp, xc=xc, pr=pr)
        self.sched(g, str(o.get("sb1", "x3@c0,x4,x5@c1,x6,x7@x4,stl,f00,f01,f10@x5,f11@x6")), tb)
        self.sched(f, str(o.get("sa1", "par2@c0,cfa,cfb,sp@x6+4")), ta)
        f.mark("ssm")
        m.flush("ssm")
        m(f"{MF} {v(SRE,16)}, {v(XAUG,4)}, {v(WAUG[0],4)}, {v(SRE,16)}")
        m(f"{MF} {v(SIM,16)}, {v(XAUG,4)}, {v(WAUG[1],4)}, {v(SIM,16)}")
        self.stamp("ssm", m)

    def scan1(self):
        m, f = self.m, self.f
        RE = lambda s: P(SRE + 2*s); IM = lambda s: P(SIM + 2*s)
        t2, t3 = vX[2], vX[3]
        m(f"""v_lshrrev_b32 v{t2}, 5, v1
              v_lshlrev_b32 v{t2}, 1, v{t2}
              s_lshl_b32 s3, {sW}, 2
              s_sub_u32 s3, {sRB}, s3
              s_sub_u32 s3, s3, 1
              v_sub_u32 v{t2}, s3, v{t2}
              v_and_b32 v{t3}, 31, v1
              v_lshlrev_b32 v{t3}, 4, v{t3}
              v_cmp_le_i32 {MV0}, 0, v{t2}
              v_cmp_le_i32 {MV1}, 1, v{t2}
              v_lshl_add_u32 v{t3}, v{t2}, 13, v{t3}
              v_mov_b32 v{t2}, 0x7ff00000
              v_add_u32 v{vLB[1]}, -8192, v{t3}
              v_cndmask_b32 v{vLB[0]}, v{t2}, v{t3}, {MV0}
              v_cndmask_b32 v{vLB[1]}, v{t2}, v{vLB[1]}, {MV1}""")
        m.wait(self.trs)
        for s in range(8): m(f"v_pk_mul_f32 {RE(s)}, {RE(s)}, {P(FB+2*s)}")
        for s in range(8): m(f"v_pk_mul_f32 {IM(s)}, {IM(s)}, {P(FB+2*s)}")
        for s in range(1, 8):
            m(f"v_pk_fma_f32 {RE(s)}, {P(pL)}, {RE(s-1)}, {RE(s)} op_sel_hi:[0,1,1]")
            m(f"v_pk_fma_f32 {IM(s)}, {P(pL)}, {IM(s-1)}, {IM(s)} op_sel_hi:[0,1,1]")
            m(f"v_pk_fma_f32 {RE(s)}, {P(pL)}, {IM(s-1)}, {RE(s)} op_sel:[1,0,0] op_sel_hi:[1,1,1] neg_lo:[1,0,0] neg_hi:[1,0,0]")
            m(f"v_pk_fma_f32 {IM(s)}, {P(pL)}, {RE(s-1)}, {IM(s)} op_sel:[1,0,0] op_sel_hi:[1,1,1]")
        aAr, aAi, aBr, aBi = SRE + 14, SIM + 14, SRE + 15, SIM + 15
        m(f"""v_fma_f32 v{pT}, v{pL8}, v{aAr}, v{aBr}
              v_fma_f32 v{pT+1}, v{pL8}, v{aAi}, v{aBi}
              v_fma_f32 v{pT}, -v{pL8+1}, v{aAi}, v{pT}
              v_fma_f32 v{pT+1}, v{pL8+1}, v{aAr}, v{pT+1}
              v_mov_b32 v{pT2}, v{pT}
              v_mov_b32 v{pT2+1}, v{pT+1}
              v_permlane32_swap_b32 v{pT}, v{pT2}
              v_permlane32_swap_b32 v{pT+1}, v{pT2+1}""")
        self.cfma(m, pW, pL16, pT, pT2)
        self.tagw = m(f"ds_write_b64 v{vAGW}, {P(pW)}")

    def agg_fill(self, f=None):
        f = f or self.f
        aAr, aAi = SRE + 14, SIM + 14
        r0 = f(f"ds_read2_b64 v[{pW}:{pW+3}], v{vAGR} offset0:0 offset1:32")
        r1 = f(f"ds_read2_b64 v[{pW+4}:{pW+7}], v{vAGR} offset0:64 offset1:96")
        f(f"""s_lshl_b32 s20, {sRB}, 4
              s_add_u32 s20, s20, {sCG}
              s_lshl_b32 s20, s20, 9
              s_add_u32 s20, s20, {AGG}
              s_lshl_b32 s21, {sW}, 3
              v_mov_b32 v{TQ+1}, {sTAG}
              v_mov_b32 v{TQ+3}, {sTAG}""")
        f.wait(r0, r1)
        c2, c3, A = pKRE, pKIM, pS
        self.cfma(f, c2, pL32, pW, pW + 2); self.cfma(f, c3, pL32, c2, pW + 4); self.cfma(f, A, pL32, c3, pW + 6)
        f(f"v_mov_b32 v{TQ}, v{A}\nv_mov_b32 v{TQ+2}, v{A+1}")
        f.grp(f"s_lshl_b64 exec, 0xff, s21\nbuffer_store_dwordx4 v[{TQ}:{TQ+3}], v{vL16}, {RWS}, s20 offen sc1\ns_mov_b64 exec, -1")
        self.stamp("agg", f)
    def carry_fill(self):
        f = self.f
        aAr, aAi = SRE + 14, SIM + 14
        c2, c3 = pKRE, pKIM
        for e in range(2):
            f(f"""v_cndmask_b32 v{pW+2+e}, 0, v{pW+e}, {MW0}
                  v_cndmask_b32 v{pW+4+e}, v{c2+e}, v{c3+e}, {MW0}
                  v_cndmask_b32 v{pW+e}, v{pW+2+e}, v{pW+4+e}, {MW1}""")
        self.cfma(f, pW + 2, pL16, pW, pT)
        f(f"v_cndmask_b32 v{pCRE}, v{pW}, v{pW+2}, {MH}\nv_cndmask_b32 v{pCIM}, v{pW+1}, v{pW+3}, {MH}")
        f(f"""v_fma_f32 v{pCRE+1}, v{pL8}, v{pCRE}, v{aAr}
              v_fma_f32 v{pCIM+1}, v{pL8}, v{pCIM}, v{aAi}
              v_fma_f32 v{pCRE+1}, -v{pL8+1}, v{pCIM}, v{pCRE+1}
              v_fma_f32 v{pCIM+1}, v{pL8+1}, v{pCRE}, v{pCIM+1}""")
    def shadow(self, p, pk, r0=0, r1=16):
        RE = lambda s: P(SRE + 2*s); IM = lambda s: P(SIM + 2*s); G = lambda s: P(GRE + 2*s)
        if pk:
            for s in range(8):
                p(f"v_pk_mul_f32 {G(s)}, {P(pC2)}, {RE(s)} op_sel_hi:[0,1]")
                p(f"v_pk_fma_f32 {G(s)}, {P(pC2)}, {IM(s)}, {G(s)} op_sel:[1,0,0] op_sel_hi:[1,1,1] neg_lo:[1,0,0] neg_hi:[1,0,0]")
                p(f"v_pk_mul_f32 {IM(s)}, {P(pC2)}, {IM(s)} op_sel_hi:[0,1] neg_lo:[1,0] neg_hi:[1,0]")
                p(f"v_pk_fma_f32 {IM(s)}, {P(pC2)}, {RE(s)}, {IM(s)} op_sel:[1,0,0] op_sel_hi:[1,1,1] neg_lo:[1,0,0] neg_hi:[1,0,0]")
        else:
            for r in range(r0, r1):
                p(f"""v_mul_f32 v{GRE+r}, v{pC2}, v{SRE+r}
                      v_fma_f32 v{GRE+r}, -v{pC2+1}, v{SIM+r}, v{GRE+r}
                      v_mul_f32 v{SIM+r}, -v{pC2}, v{SIM+r}
                      v_fma_f32 v{SIM+r}, -v{pC2+1}, v{SRE+r}, v{SIM+r}""")
    def lb_issue(self, f):
        f(f"s_lshl_b32 s28, {sCG}, 9\ns_add_u32 s28, s28, {AGG}")
        self.lb_loads = [f"buffer_load_dwordx4 v[{LBK}:{LBK+3}], v{vLB[0]}, {RWS}, s28 offen sc1",
                         f"buffer_load_dwordx4 v[{LBK+4}:{LBK+7}], v{vLB[1]}, {RWS}, s28 offen sc1"]
        self.tlb = [f(l) for l in self.lb_loads]
    def lb_part(self, f):
        chk = [f"v_cmp_ne_u32 s[20:21], {sTAG}, v{LBK+1}", f"v_cmp_ne_u32 s[22:23], {sTAG}, v{LBK+3}",
               f"v_cmp_ne_u32 s[24:25], {sTAG}, v{LBK+5}", f"v_cmp_ne_u32 s[26:27], {sTAG}, v{LBK+7}",
               "s_or_b64 s[20:21], s[20:21], s[22:23]", "s_or_b64 s[24:25], s[24:25], s[26:27]",
               f"s_and_b64 s[20:21], s[20:21], {MV0}", f"s_and_b64 s[24:25], s[24:25], {MV1}",
               "s_or_b64 vcc, s[20:21], s[24:25]"]
        self.poll(f, self.lb_loads, chk, self.tlb)
        self.stamp("lb", f)
        f(f"v_mov_b32 v{LBK+1}, v{LBK+2}\nv_mov_b32 v{LBK+5}, v{LBK+6}")
        self.cmul(f, pT, pV0, LBK); self.cfma(f, pT2, pV1, LBK + 4, pT)
        f(f"""v_mov_b32 v{pT}, v{pT2}
              v_mov_b32 v{pT+1}, v{pT2+1}
              v_permlane32_swap_b32 v{pT}, v{pT2}
              v_permlane32_swap_b32 v{pT+1}, v{pT2+1}
              v_add_f32 v{pT}, v{pT}, v{pT2}
              v_add_f32 v{pT+1}, v{pT+1}, v{pT2+1}""")
        self.tlbw = f(f"ds_write_b64 v{vAGW}, {P(pT)} offset:1024")
    def k_fill(self, f):
        r0 = f(f"ds_read2_b64 v[{pW}:{pW+3}], v{vAGR} offset0:128 offset1:160")
        r1 = f(f"ds_read2_b64 v[{pW+4}:{pW+7}], v{vAGR} offset0:192 offset1:224")
        f.pad(); f.wait(r0, r1)
        for e in range(2):
            f(f"v_add_f32 v{pW+e}, v{pW+e}, v{pW+2+e}\nv_add_f32 v{pW+4+e}, v{pW+4+e}, v{pW+6+e}")
        for e in range(2): f(f"v_add_f32 v{pS+e}, v{pW+e}, v{pW+4+e}")
        for e in range(2):
            f(f"""v_fma_f32 v{pKRE+e}, v{pPRE+e}, v{pS}, v{pCRE+e}
                  v_fma_f32 v{pKIM+e}, v{pPIM+e}, v{pS}, v{pCIM+e}
                  v_fma_f32 v{pKRE+e}, -v{pPIM+e}, v{pS+1}, v{pKRE+e}
                  v_fma_f32 v{pKIM+e}, v{pPRE+e}, v{pS+1}, v{pKIM+e}""")
    def scan2(self, p):
        IM = lambda s: P(SIM + 2*s); G = lambda s: P(GRE + 2*s); Q = lambda s: P(pQ + 2*s)
        for s in range(8):
            p(f"v_pk_fma_f32 {G(s)}, {Q(s)}, {P(pKRE)}, {G(s)} op_sel_hi:[0,1,1]")
            p(f"v_pk_fma_f32 {IM(s)}, {Q(s)}, {P(pKIM)}, {IM(s)} op_sel_hi:[0,1,1] neg_lo:[1,0,0] neg_hi:[1,0,0]")
            p(f"v_pk_fma_f32 {G(s)}, {Q(s)}, {P(pKIM)}, {G(s)} op_sel:[1,0,0] op_sel_hi:[1,1,1] neg_lo:[1,0,0] neg_hi:[1,0,0]")
            p(f"v_pk_fma_f32 {IM(s)}, {Q(s)}, {P(pKRE)}, {IM(s)} op_sel:[1,0,0] op_sel_hi:[1,1,1] neg_lo:[1,0,0] neg_hi:[1,0,0]")
    def s_out(self, f):
        O = SRE; ws = []
        for c, src in enumerate((GRE, SIM)):
            for n in range(8): f(f"v_cvt_pk_bf16_f32 v{O+8*c+n}, v{src+2*n}, v{src+2*n+1}")
        for q in range(4):
            if q: f(f"v_xor_b32 v{vHW+1}, {16*q}, v{vHW}")
            for c in range(2):
                ws.append(f(f"ds_write_b64 v{vHW + (1 if q else 0)}, {P(O+8*c+2*q)} offset:{2048*c}"))
        f(f"s_lshl_b32 s20, {sQ}, 12\ns_add_u32 s20, s20, {sHB}")
        f.wait(ws)
        rs = []
        for c in range(2):
            for j in range(2):
                for x in range(2):
                    rs.append(f(f"ds_read_b64_tr_b16 {P(GRE+8*c+4*j+2*x)}, v{vHR+x} offset:{2048*c+1024*j}"))
        f.pad()
        self.tH[3] = []
        for c in range(2):
            for j in range(2):
                f.wait(rs[4*c+2*j: 4*c+2*j+2])
                if self.pzm & 8: f(f"v_min_u32 v{GRE+8*c+4*j+3}, -2, v{GRE+8*c+4*j+3}")
                self.tH[3].append(self.hstore(f, f"buffer_store_dwordx4 {v(GRE+8*c+4*j,4)}, v{vL16}, {RWS}, s20 offen offset:{2048*c+1024*j}", 3 if c + j == 2 else None))
        self.readback(f, 3)
    def f_epi(self, f, k):
        acc = (FA, FB, FA)[k]; O = (OF0, OF1, CSA)[k]
        f(f"s_lshl_b32 s20, {sQ}, 11\ns_add_u32 s20, s20, {sHB}")
        f(f"s_add_u32 s20, s20, {HK[k]}")
        self.tH[k] = []
        for e in range(2):
            for n in range(8): f(f"v_mul_f32 v{acc+8*e+n}, v{vRS}, v{acc+8*e+n}")
            for n in range(4): f(f"v_cvt_pk_bf16_f32 v{O+4*e+n}, v{acc+8*e+2*n}, v{acc+8*e+2*n+1}")
            for n in range(4): f(f"v_pk_max_i16 v{O+4*e+n}, v{O+4*e+n}, 0")
            self.tH[k].append(self.hstore(f, f"buffer_store_dwordx4 {v(O+4*e,4)}, v{vL16}, {RWS}, s20 offen offset:{1024*e}", k if e else None))
        self.readback(f, k)
    def readback(self, f, k):
        if not self.opt.get("rb", 1) or self.hs == 3 or self.pzm >> k & 1: return
        f(f"v_lshlrev_b32 v{TQ}, 6, v1" + (f"\nv_and_b32 v{TQ}, 0x7ff, v{TQ}" if k < 3 else ""))
        self.tH[k].append(f(f"buffer_load_dword a253, v{TQ}, {RWS}, s20 offen sc1"))
    def flag(self, f, k):
        f.wait(self.tH[k])
        self.hstore(f, f"buffer_store_dword v{vTAG}, off, {RWS}, {sFLW} offset:{32*k}")
        self.stamp(f"fl{k}", f)

    def scan2_plain(self, p):
        for r in range(16):
            s, e = r >> 1, r & 1
            p(f"""v_fma_f32 v{GRE+r}, v{pQ+2*s}, v{pKRE+e}, v{GRE+r}
                  v_fma_f32 v{SIM+r}, -v{pQ+2*s}, v{pKIM+e}, v{SIM+r}
                  v_fma_f32 v{GRE+r}, -v{pQ+2*s+1}, v{pKIM+e}, v{GRE+r}
                  v_fma_f32 v{SIM+r}, -v{pQ+2*s+1}, v{pKRE+e}, v{SIM+r}""")
    def p2addr(self, f):
        t0, t1, t2, t3 = TQ, TQ + 1, TQ + 2, TQ + 3
        f(f"s_and_b32 s20, {sQ}, 1\ns_lshl_b32 s20, s20, 6")
        for j in range(4):
            f(f"v_and_b32 v{vRCA[j]}, 0xfff, v{vRI[j]}\nv_xor_b32 v{vRCA[j]}, s20, v{vRCA[j]}\nv_add_u32 v{vRCD[j]}, {RD}, v{vRCA[j]}")
        f(f"""v_lshrrev_b32 v{t0}, 5, v1
              v_bfe_u32 v{t1}, v1, 2, 2
              v_lshl_add_u32 v{t1}, v{t0}, 3, v{t1}
              v_and_b32 v{t2}, 3, v1
              v_lshlrev_b32 v{t2}, 3, v{t2}
              v_lshl_add_u32 v{t1}, v{t1}, 7, v{t2}
              v_and_b32 v{t2}, 16, v1
              v_lshl_add_u32 v{t1}, v{t2}, 1, v{t1}
              v_and_b32 v{t2}, 8, v1
              v_lshl_add_u32 v{t1}, v{t2}, 3, v{t1}
              s_lshl_b32 s20, {sC}, 6
              s_add_u32 s20, s20, {RB}
              v_xor_b32 v{vT2[1]}, s20, v{t1}
              v_xor_b32 v{vT2[0]}, 64, v{vT2[1]}
              v_add_u32 v{vT2E[0]}, {RE-RB}, v{vT2[0]}
              v_add_u32 v{vT2E[1]}, {RE-RB}, v{vT2[1]}
              s_mul_i32 s20, {sC}, 0x7ff00000
              v_or_b32 v{vHZ}, s20, v{vL16}
              v_and_b32 v{t2}, 31, v1
              v_lshlrev_b32 v{t2}, 1, v{t2}
              v_lshl_add_u32 v{vXB}, v{t0}, 14, v{t2}
              v_lshlrev_b32 v{vOUT}, 1, v{vXB}""")
    def fpoll_load(self, f):
        self.fpl = f"buffer_load_dword v{vPF}, v{vFL}, {RWS}, 0 offen sc1"
        self.tpf = f(self.fpl)
    def fpoll(self, f, k):
        mask = (0x3F if k == 2 else 0xFF) << (8 * k)
        self.poll(f, [self.fpl], [f"v_cmp_ne_u32 vcc, {sTAG}, v{vPF}", f"s_and_b32 s31, vcc_lo, {mask:#x}"], [self.tpf])
        self.stamp(f"pl{k}", f)
    def hloads(self, f, k):
        if k < 2:
            f(f"s_lshl_b32 s30, {sQ}, 11\ns_add_u32 s30, s30, {sHB}\ns_add_u32 s30, s30, {HK[k]}")
            for n in range(1, 8):
                f(f"s_xor_b32 s29, s30, {n << 11}")
                for e in range(2):
                    self.th[(k, n, e)] = f(f"buffer_load_dwordx4 {a((F0R, F1R)[k] + (n-1)*8 + 4*e, 4)}, v{vL16}, {RWS}, s29 offen offset:{1024*e}{self.hl}")
                f.mark(f"h{k}_{n}")
        elif k == 2:
            for n in range(6):
                if n % 2 == 0: f(f"s_add_u32 s29, {sHB}, {HK[2] + 2048*n}")
                for e in range(2):
                    self.th[(2, n, e)] = f(f"buffer_load_dwordx4 {rr(F2R[n], 4*e)}, v{vHZ if n == 5 else vL16}, {RWS}, s29 offen offset:{(n&1)*2048 + 1024*e}{self.hl}")
                f.mark(f"h2_{n}")
        else:
            f(f"s_lshl_b32 s30, {sQ}, 12\ns_add_u32 s30, s30, {sHB}")
            for n in range(1, 8):
                f(f"s_xor_b32 s29, s30, {n << 12}")
                for c in range(2):
                    for e in range(2):
                        self.th[(3, n, c, e)] = f(f"buffer_load_dwordx4 {a(SR + (n-1)*16 + 8*c + 4*e, 4)}, v{vL16}, {RWS}, s29 offen offset:{2048*c + 1024*e}{self.hl}")
                f.mark(f"h3_{n}")
    def base_load(self, f):
        f(f"s_lshl_b32 s29, {sQ}, 7\ns_lshl_b32 s30, {sC}, 6\ns_add_u32 s29, s29, s30\ns_add_u32 s29, s29, {sXO}")
        self.tbx = {}
        for g in range(4):
            if g: f("s_add_u32 s29, s29, 4096")
            for j in range(4):
                r = (g >> 1) + 8 * (g & 1) + 4 * (j >> 1) + 2 * (j & 1)
                self.tbx[r] = f(f"buffer_load_ushort v{bX+r}, v{vXB}, {RX}, s29 offen offset:{1024*j}")
        self.tbs = [f(f"ds_read_b128 {v(bR+4*g,4)}, v{vSTR} offset:{32*g}") for g in range(4)] + [f(f"ds_read_b128 {v(bM+4*g,4)}, v{vSTR} offset:{128+32*g}") for g in range(4)]
    def base_calc(self, f):
        f.wait(self.tbs, self.tds, list(self.tbx.values()))
        f(f"v_lshlrev_b32 v{vDS}, 16, v{vDS}")
        if self.opt.get("bfast", 1):
            for r in range(16):
                f(f"v_lshlrev_b32 v{bX+r}, 16, v{bX+r}\nv_mul_f32 v{bR+r}, v{bR+r}, v{vDS}\nv_sub_f32 v{bM+r}, v{bX+r}, v{bM+r}\nv_fmac_f32 v{bX+r}, v{bM+r}, v{bR+r}")
            return
        for r in range(0, 16, 2):
            x0, x1, m0, m1, T = bX + r, bX + r + 1, bM + r, bM + r + 1, bT + (r & 2)
            rnd = f"v_cvt_pk_bf16_f32 v{T}, v{m0}, v{m1}\nv_lshlrev_b32 v{m0}, 16, v{T}\nv_and_b32 v{m1}, 0xffff0000, v{T}"
            f(f"""v_lshlrev_b32 v{x0}, 16, v{x0}
                  v_lshlrev_b32 v{x1}, 16, v{x1}
                  v_sub_f32 v{m0}, v{x0}, v{m0}
                  v_sub_f32 v{m1}, v{x1}, v{m1}
                  {rnd}
                  v_mul_f32 v{m0}, v{m0}, v{bR+r}
                  v_mul_f32 v{m1}, v{m1}, v{bR+r+1}
                  {rnd}
                  v_mul_f32 v{m0}, v{m0}, v{vDS}
                  v_mul_f32 v{m1}, v{m1}, v{vDS}
                  {rnd}
                  v_add_f32 v{x0}, v{x0}, v{m0}
                  v_add_f32 v{x1}, v{x1}, v{m1}""")
    def send(self, f):
        if self.opt.get("xp", 0):
            for r in range(16): f(f"v_perm_b32 v{SND + r}, v{SRE+r}, v{vTAG}, s{20 + (r & 3)}")
            f(f"""s_lshl_b32 s20, {sRG}, 3
                  s_add_u32 s20, s20, {sQ}
                  s_lshl_b32 s20, s20, 1
                  s_add_u32 s20, s20, {sC}
                  s_xor_b32 s23, s20, 1
                  s_lshl_b32 s20, s20, 12
                  s_lshl_b32 s23, s23, 12
                  s_add_u32 s20, s20, {XCH}
                  s_add_u32 s23, s23, {XCH}""")
            for n in range(4):
                f(f"buffer_store_dwordx4 {v(SND+4*n,4)}, v{vL16}, {RWS}, s20 offen offset:{n*1024} sc1")
            self.stamp("snd", f)
            return
        for r in range(16): f(f"v_mov_b32 v{SND + 4*(r//3) + r % 3}, v{SRE+r}")
        f(f"""s_lshl_b32 s20, {sRG}, 3
              s_add_u32 s20, s20, {sQ}
              s_lshl_b32 s20, s20, 1
              s_add_u32 s20, s20, {sC}
              s_xor_b32 s23, s20, 1
              s_mul_i32 s20, s20, 6144
              s_mul_i32 s23, s23, 6144
              s_add_u32 s20, s20, {XCH}
              s_add_u32 s23, s23, {XCH}
              s_add_u32 s21, s20, 4096
              s_add_u32 s24, s23, 4096""")
        for n in range(6):
            f(f"buffer_store_dwordx4 {v(SND+4*n,4)}, v{vL16}, {RWS}, s{20 + n//4} offen offset:{(n&3)*1024} sc1")
        self.stamp("snd", f)
    def recv_load(self, f):
        self.rcl = [f"buffer_load_dwordx4 {v(RCV+4*n,4)}, v{vL16}, {RWS}, s{23 + n//4} offen offset:{(n&3)*1024} sc1" for n in range(4 if self.opt.get("xp", 0) else 6)]
        self.trc = [f(l) for l in self.rcl]

    def stream(self):
        m, f, o = self.m, self.f, self.opt
        MF = "v_mfma_f32_32x32x16_bf16"; M16_ = "v_mfma_f32_16x16x32_bf16"
        gq = self.g
        LA = o.get("la", 6); REG = [RE, RD, RA]
        ops = [("F", k, ks) for k in range(3) for ks in range(32)]
        def grp(name, dh):
            if name == "o":
                return [("W", 0, 0, e, dh) for e in range(2)] + [("W", 1, 0, e, dh) for e in range(2)] + [("C", 0, c, e, dh) for c in range(2) for e in range(2)]
            if name in "01": return [("W", int(name), n, e, dh) for n in range(1, 8) for e in range(2)]
            if name == "2": return [("W", 2, n, e, dh) for n in range(6) for e in range(2)]
            return [("C", n, c, e, dh) for n in range(1, 8) for c in range(2) for e in range(2)]
        left = {}
        for tok in str(o.get("ord", "o*+0*+1s+1k:6+3s+2s+1k+3k+2k")).split("+"):
            nm, md = tok[0], tok[1]; cnt = int(tok.split(":")[1]) if ":" in tok else 99
            for dh in (0, 1): left.setdefault((nm, dh), grp(nm, dh))
            if md == "*":
                x = [z for pr in zip(left[(nm, 0)], left[(nm, 1)]) for z in pr]; left[(nm, 0)] = []; left[(nm, 1)] = []
            else:
                dh = "sk".index(md); x = left[(nm, dh)][:cnt]; left[(nm, dh)] = left[(nm, dh)][cnt:]
            ops += x
        assert len(ops) == 96 + 152 and len(set(ops)) == len(ops)
        post = o.get("post", 0)
        def gate(op):
            if op[0] == "F": return f"BF{op[1]}" if op[2] >= 8 else None
            if op[0] == "W": return ("BE" if post else "BF2", "BE", "BW")[op[1]]
            return ("BE" if o.get("c1be", 1) else "BC") if op[1] < 4 else "BW"
        passed = {None}; rd = {}; st = dict(nxt=0); free = set(range(8))
        def issue(g):
            op = ops[g]; s = RING + (g % 8) * 4
            if op[0] == "F":
                _, k, ks = op
                if ks == 0 and k: m(f"v_xor_b32 v{vTF}, {0x6000 ^ REG[k-1] ^ REG[k]}, v{vTF}")
                elif ks and ks % 8 == 0: m(f"v_xor_b32 v{vTF}, {0x6000 if ks == 16 else 0x2000}, v{vTF}")
                if ks in (0, 4): m.flush(f"t_f{k}{ks>>2}"); m.lw(lambda k=k, i=ks >> 2: self.tF[(k, i)])
                rd[g] = [m(f"ds_read_b64_tr_b16 {v(s+2*x,2)}, v{vTF} offset:{((ks>>2)&1)*4096 + (ks&3)*1024 + x*256}") for x in range(2)]
            elif op[0] == "W":
                _, k, n, e, dh = op
                m.flush("t_p2a")
                b, off = ((vT2, 0), (vT2E, 0), (vT2, RC - RB))[k]
                rd[g] = [m(f"ds_read_b64_tr_b16 {v(s+2*x,2)}, v{b[dh]} offset:{off + (2*n+e)*2048 + x*512}") for x in range(2)]
            else:
                _, n, c, e, dh = op
                pl = n >> 1
                rd[g] = [m(f"ds_read_b128 {v(s,4)}, v{(vRCD, vRCA)[pl>>1][2*(n&1)+e]} offset:{((pl&1)*4 + c*2 + dh)*4096}")]
        def pump(lim):
            while st["nxt"] <= lim and st["nxt"] < len(ops) and st["nxt"] in free and gate(ops[st["nxt"]]) in passed:
                issue(st["nxt"]); st["nxt"] += 1
        def barrier(name, toks=()):
            if toks: m.lw(lambda: toks())
            m("s_barrier"); self.stamp(name, m); m.pos(name); passed.add(name)
        first = {}; chkd = set()
        def blk(k, n):
            m.flush(f"h{k}_{n}")
            if self.pzm >> k & 1 and (k, n) not in chkd:
                chkd.add((k, n))
                m.lw(lambda: [t for key, t in self.th.items() if key[:2] == (k, n)])
                self.stamp(f"a{k}{n}", m)
                self.hcheck(m, k, n)
                self.stamp(f"k{k}{n}", m)
        def mm(g):
            op = ops[g]; s = v(RING + (g % 8) * 4, 4)
            assert g in rd, (g, op)
            if o.get("w2", 1) and g % 2 == 0 and g + 1 in rd: m.wait(rd[g + 1])
            if op[0] == "F":
                _, k, ks = op; acc = v((FA, FB, FA)[k], 16)
                m.wait(rd[g]); m(f"{MF} {acc}, {s}, {a(XA+4*ks,4)}, {acc if ks else 0}")
            else:
                dh = op[-1]; acc = v((SRE, SIM)[dh], 16)
                if op[0] == "W":
                    _, k, n, e, _ = op
                    if k < 2 and n == 0: m.flush(f"t_e{k}"); A = v((OF0, OF1)[k] + 4*e, 4)
                    else:
                        blk(k, n); m.lw(lambda key=(k, n, e): self.th[key]); A = rr(F2R[n], 4*e) if k == 2 else a((F0R, F1R)[k] + (n - 1)*8 + 4*e, 4)
                else:
                    _, n, c, e, _ = op
                    if n == 0: A = v(GRE + 8*c + 4*e, 4)
                    else:
                        blk(3, n); m.lw(lambda key=(3, n, c, e): self.th[key]); A = a(SR + (n-1)*16 + 8*c + 4*e, 4)
                m.wait(rd[g]); m(f"{MF} {acc}, {A}, {s}, {acc if dh in first else 0}"); first[dh] = 1
        def cs(g):
            _, k, ks = ops[g]; acc = v(CSA + 4*(k & 1), 4)
            m.wait(rd[g]); m(f"{M16_} {acc}, {v(SEL,4)}, {v(RING+(g%8)*4,4)}, {acc if ks else 0}")
        self.th = {}
        if o.get("b3e", 0):
            barrier("B3", lambda: [self.tagw])
            self.agg_fill(m); m.pos("aggm")
            pump(7)
        else:
            pump(7)
            barrier("B3", lambda: [self.tagw])
        lbb = o.get("lbb", 0)
        gBW = min(g for g, op in enumerate(ops) if gate(op) == "BW")
        gBC = min([g for g, op in enumerate(ops) if gate(op) == "BC"], default=None)
        lastsend = max(g for g, op in enumerate(ops) if op[0] != "F" and op[-1] == 0)
        lastf0r = max(g for g, op in enumerate(ops) if op[0] == "W" and op[1] == 0)
        for k in range(3):
            G = 32 * k
            if k == 2: m.flush("t_e0")
            for ks in range(4):
                mm(G + ks); pump(G + ks + LA); m.slot(); cs(G + ks); free.add(G + ks + 8); m.slot()
            for ks in range(4, 8): cs(G + ks); m.slot()
            mm(G + 4); free.add(G + 12); m.slot()
            w = self.cs_write(m, 2 + k, CSA + 4*(k & 1))
            if k == 2 and post: barrier("BF2", lambda w=w: [w])
            elif k == 2 and not lbb:
                m.flush("t_lbp"); m.flush("t_w0"); barrier("BF2", lambda w=w: [w, self.tlbw, self.tW[0]]); m.pos("BL")
            elif k == 2:
                m.flush("t_w0"); barrier("BF2", lambda w=w: [w, self.tW[0]])
            else: barrier(f"BF{k}", lambda w=w: [w])
            pump(G + 11)
            for ks in range(5, 32):
                g = G + ks
                if g == lbb: m.flush("t_lbp"); barrier("BL", lambda: [self.tlbw])
                if k == 2 and ks == o.get("be", 30) and post: barrier("BA", lambda: [rd[95]])
                elif k == 2 and ks == o.get("be", 30):
                    m.flush("t_so"); m.flush("t_cf2"); m.flush("t_w1"); m.flush("t_c1")
                    barrier("BE", lambda: [rd[95], self.tW[1]] + ([self.tC[0]] if o.get("c1be", 1) else []))
                mm(g); free.add(g + 8); pump(g + LA)
                if g == 64 + o.get("s2", 13) and o.get("s2pk", 1) and post < 2:
                    m.flush("t_kf"); m.flush("t_sh1"); self.scan2(m); m.pos("s2")
                m.slot()
            m.flush(f"t_cf{k}")
            acc = v((FA, FB, FA)[k], 16)
            m(f"{MF} {acc}, {v(WAUG[k&1],4)}, {v(XAUG,4)}, {acc}"); m.pos(f"F{k}end"); self.stamp(f"F{k}end", m); m.slot()
        if post:
            xs = o.get("xs", 6)
            if o.get("e2p", 1): m.flush("t_e2"); m.slot(xs, 4)
            if not lbb: m.flush("t_lbp"); barrier("BL", lambda: [self.tlbw]); m.slot(xs, 2)
            if post > 1: m.flush("t_kf"); m.flush("t_sh1"); m.slot(xs, 3); self.scan2(m); m.pos("s2"); m.slot(xs, 6)
            m.flush("t_so"); m.slot(xs, 8); m.flush("t_cf2"); m.flush("t_w0"); m.flush("t_w1"); m.flush("t_c1")
            barrier("BE", lambda: [self.tW[0], self.tW[1]] + ([self.tC[0]] if o.get("c1be", 1) else []))
            pump(95 + LA)
        for g in range(96, len(ops)):
            mm(g); free.add(g + 8)
            if g == gBW - LA + o.get("bwd", 0): m.flush("t_c2"); m.flush("t_w2"); barrier("BW", lambda: [self.tC[1], self.tW[2]])
            if gBC is not None and g == max(96, gBC - LA): barrier("BC", lambda: [self.tC[0]])
            pump(g + LA)
            if g == lastsend: m.pos("lastsend")
            if g == lastf0r: m.pos("lastf0r")
            m.slot()
        m.pos("mend"); self.stamp("mend", m)
        m.flush("end"); m.flush("endb")
        shs = o.get("shs", 8)
        def T(q, pos, needs, fn, *a_):
            def go():
                for x in pos: q.after(*x) if isinstance(x, tuple) else q.after(x)
                for x in needs: q.need("t_" + x)
                fn(*a_)
            return go
        def ph(k):
            if not self.pzm >> k & 1: self.fpoll(gq, k)
            elif self.hs == 4: self.fbpoll(gq, k)
            self.hloads(gq, k)
        def snd():
            if o.get("xp", 0):
                for n in range(4): f(f"s_mov_b32 s{20+n}, {0x07060500 + n:#x}")
            else:
                for n in range(6): f(f"v_mov_b32 v{SND+4*n+3}, v{vTAG}")
            f.after("lastsend", 1); self.send(f)
            f.after("lastsend", o.get("rcd", 30)); f.wait(self.tH[2]); self.recv_load(f)
        def so():
            if not o.get("s2pk", 1): self.scan2_plain(f)
            self.s_out(f)
        X = ["xc"] if self.hs in (2, 4) else []
        X3 = ["xc"] if self.hs == 3 else []
        ta = dict(agg=T(f, ["B3"], [], self.agg_fill) if not o.get("b3e", 0) else T(f, ["aggm"], [], lambda: None), car=T(f, [], ["agg"], self.carry_fill), pr=self.pr,
                  cf0=T(f, ["BF0"], [], self.cs_final, f, 2, WAUG[0]), cf1=T(f, ["BF1"], [], self.cs_final, f, 3, WAUG[1]), cf2=T(f, ["BF2"], [], self.cs_final, f, 4, WAUG[0]),
                  sh0=T(f, [], [], self.shadow, f, 0, 0, shs), sh1=T(f, [], ["car"], self.shadow, f, 0, shs, 16),
                  e0=T(f, [("F0end", 1)], X, self.f_epi, f, 0), e1=T(f, [("F1end", 1)], self.tmk + [x.split("@")[0] for x in str(o.get("sb2", "")).split(",") if x[0] == "T"] + X3, self.f_epi, f, 1), e2=T(f, [("F2end", 1)], ["e1"], self.f_epi, f, 2),
                  p2a=T(f, [], X + ["f21"], self.p2addr, f), lbp=T(f, [], ["lbi"], self.lb_part, f), kf=T(f, ["BL"], [], self.k_fill, f),
                  so=T(f, ["s2"] if o.get("s2pk", 1) else [], ["kf"], so), bc=T(f, [], ["bl"], self.base_calc, f), snd=T(f, [], ["e2"], snd),
                  xc=self.xc)
        for k in range(4): ta[f"f{k}"] = T(f, [], [f"e{k}" if k < 3 else "so"], self.flag, f, k)
        tb = dict(f20=T(gq, ["B3"], [], self.fdma, gq, 2, 0), f21=T(gq, ["B3"], [], self.fdma, gq, 2, 1), w0=T(gq, ["B3"], [], self.w2dma, gq, 0),
                  w1=T(gq, ["BF1"], [], self.w2dma, gq, 1), c1=T(gq, ["BF2"], [], self.cdma, gq, 0), c2=T(gq, ["BA" if post else "BE"], [], self.cdma, gq, 1), w2=T(gq, ["BE"], [], self.w2dma2, gq),
                  lbi=T(gq, [], ["car"] + X, self.lb_issue, gq), bl=T(gq, [], ["so"], self.base_load, gq), xl=self.xl)
        for k in range(4):
            tb[f"l{k}"] = T(gq, ["B3"], [], self.fpoll_load, gq)
            tb[f"p{k}"] = T(gq, ["F2end"] if k > 1 else [], ((X3 + ([f"e{k}" if k < 3 else "so"] if self.hs == 4 else [])) if self.pzm >> k & 1 else [f"f{k}"]) + (["p2a"] if k == 2 or self.hs == 4 else []), ph, k)
        self.sched(gq, str(o.get("sb2", "xl@t_agg,f20,f21,w0,lbi@BF0+24,w1,c1,c2,w2,l0@F2end+6,bl,p0@F2end+14,l1@F2end+30,p1@F2end+44,l3@F2end+50,p3@F2end+62,l2@lastf0r+40,p2@lastf0r+50")), tb)
        self.sched(f, str(o.get("sa2", "agg,car,cf0,sh0,xc,e0,cf1,sh1,p2a,e1,lbp,kf,cf2,f0@F0end+48,so,e2,f1@F2end+6,f3@F2end+26,bc@F2end+30,f2@F2end+46,snd")), ta)
        f.mark("end"); gq.mark("endb")

    def final(self, p):
        o = self.opt
        p(f"""s_lshl_b32 s20, {sRG}, 16
              s_lshl_b32 s21, {sQ}, 8
              s_add_u32 s20, s20, s21
              s_lshl_b32 s21, {sC}, 7
              s_add_u32 s20, s20, s21""")
        for r in range(0, 16, 2): p(f"v_pk_add_f32 {P(SIM+r)}, {P(SIM+r)}, {P(bX+r)}")
        chk = []; xp = o.get("xp", 0)
        if xp:
            p("s_mov_b32 s24, 0x0c0c0400\ns_mov_b32 s25, 0x04000c0c")
            for n in range(4):
                t0, t1 = vCK[2*(n&1)], vCK[2*(n&1)+1]
                chk += [f"v_perm_b32 v{t0}, v{RCV+4*n+1}, v{RCV+4*n}, s24", f"v_perm_b32 v{t1}, v{RCV+4*n+3}, v{RCV+4*n+2}, s25", f"v_or_b32 v{t0}, v{t0}, v{t1}",
                        f"v_cmp_ne_u32 s[{26+2*(n&1)}:{27+2*(n&1)}], {sTAG}, v{t0}"]
                if n == 1: chk.append("s_or_b64 s[30:31], s[26:27], s[28:29]")
            chk += ["s_or_b64 s[26:27], s[26:27], s[28:29]", "s_or_b64 s[30:31], s[30:31], s[26:27]"]
        for n in range(0 if xp else 6):
            chk.append(f"v_cmp_ne_u32 s[{26+2*(n&1)}:{27+2*(n&1)}], {sTAG}, v{RCV+4*n+3}")
            if n == 1: chk.append("s_or_b64 s[30:31], s[26:27], s[28:29]")
            elif n & 1: chk += ["s_or_b64 s[30:31], s[30:31], s[26:27]", "s_or_b64 s[30:31], s[30:31], s[28:29]"]
        self.poll(p, self.rcl, chk, self.trc)
        self.stamp("rcv", p)
        osf = ["", " sc1", " sc0 sc1", " nt", " sc1 nt"][o.get("os", 1)]
        for g in range(8):
            if g: p("s_add_u32 s20, s20, 4096")
            for j in range(2):
                t = 2*g + j
                r = (t >> 3) + 8*((t >> 2) & 1) + 4*((t >> 1) & 1) + 2*(t & 1)
                p(f"v_add_f32 v{SIM+r}, v{SIM+r}, v{RCV + (r if xp else 4*(r//3) + r % 3)}")
                p(f"buffer_store_dword v{SIM+r}, v{vOUT}, {ROUT}, s20 offen offset:{2048*j}{osf}")
    def finish(self, p):
        p(f"s_lshl_b32 s3, {sRB}, 4\ns_add_u32 s3, s3, {sCG}\ns_lshl_b32 s3, s3, 2\ns_add_u32 s3, s3, {sW}\ns_cmp_lg_u32 s3, {15*64}\ns_cbranch_scc1 L_NG")
        p.raw(f"""v_mov_b32 v15, {GOFF}
                  s_mov_b64 exec, 1
                  buffer_store_dword v{vTAG}, v15, {RWS}, 0 offen sc1
                  s_mov_b64 exec, -1""")
        p("L_NG:")
        if self.opt.get("spinexp"):
            p.raw(f"s_add_u32 s80, s80, {self.opt['spinexp']}\nL_SPX:\ns_memrealtime s[20:21]\ns_waitcnt lgkmcnt(0)\ns_sub_u32 s20, s20, s80\ns_cmp_lt_i32 s20, 0\ns_cbranch_scc1 L_SPX")
        if self.stamps:
            p("s_waitcnt vmcnt(0)")
            p(f"s_memtime s[34:35]\ns_memrealtime s[20:21]\ns_waitcnt lgkmcnt(0)")
            if self.opt.get("dbg"):
                assert self.nst <= 9
                p("s_mov_b64 exec, 1\nv_mov_b32 v15, 0\ns_not_b32 s21, s80\nv_mov_b32 v14, s21\nglobal_atomic_umax v15, v14, s[100:101] sc1\nv_mov_b32 v14, s20\nglobal_atomic_umax v15, v14, s[100:101] offset:4 sc1")
                p("v_mov_b32 v14, s80\nglobal_atomic_umax v15, v14, s[100:101] offset:8 sc1")
                for i, r in enumerate([84 + 2*i for i in range(self.nst - 1)] + [34]):
                    p(f"s_sub_u32 s21, s{r}, s82\nv_mov_b32 v14, s21\nglobal_atomic_umax v15, v14, s[100:101] offset:{12+4*i} sc1")
            p(f"s_lshl_b32 s3, s3, 6\ns_add_u32 s3, s3, {TS}\nv_mov_b32 v15, 0\ns_mov_b64 exec, 1")
            regs = [80] + [82 + 2*i for i in range(self.nst)] + [34, 20]
            for i, r in enumerate(regs):
                p(f"v_mov_b32 v14, s{r}\nbuffer_store_dword v14, v15, {RWS}, s3 offen offset:{4*i}")
            p(f"v_mov_b32 v14, {sBUD}\nbuffer_store_dword v14, v15, {RWS}, s3 offen offset:60")
        p("L_END:\ns_endpgm")
        if self.hs >= 3: self.hchains()
        for b in self.ool: p.raw(b)

    def build(self):
        p = self.p; o = self.opt
        self.prologue(); self.stats()
        self.xdma(p, 2)
        if self.hs >= 3 and o.get("pz", 0) == 2: self.poison(p)
        self.touches(p, "t4", OF1, OF1 + 1)
        if "par@" not in str(o.get("sa1", "")) and "par," not in str(o.get("sa1", "")): self.params(p)
        self.m, self.f, self.g = Pg(), Pg(), Pg(); self.tH = {}
        self.ssm(); self.scan1(); self.stream()
        q = Pg(); self.final(q); self.finish(q)
        items = p.items + weave(self.m.items, [self.f.items, self.g.items], cap=o.get("cap", 7), cap16=o.get("cap16", 3), gap=o.get("gap", 0), verbose=o.get("verb", 0))
        for it in q.items: items += it.items if it.kind == "grp" else [it]
        body = finalize(items, verbose=True)
        hdr = open(f"cdna_kernels/{NAME}.s.ref").read().split("; Override")[0]
        k = self.kname
        launch = "; @launch grid=(256,1,1) block=(256,1,1) lds=163840" if k == NAME + "_kernel" else f"; @launch kernel={k} grid=(256,1,1) block=(256,1,1) lds=163840"
        return (hdr + launch + "\n" + '.amdgcn_target "amdgcn-amd-amdhsa--gfx950"\n.text\n' + f".globl {k}\n.p2align 8\n.type {k},@function\n{k}:\n"
                + "\n".join(body) + "\n" + f""".section .rodata,"a"
.p2align 6
.amdhsa_kernel {k}
  .amdhsa_next_free_vgpr 512
  .amdhsa_next_free_sgpr 102
  .amdhsa_accum_offset 256
  .amdhsa_group_segment_fixed_size 0
  .amdhsa_kernarg_size 120
  .amdhsa_user_sgpr_count 2
  .amdhsa_user_sgpr_kernarg_segment_ptr 1
  .amdhsa_system_sgpr_workgroup_id_x 1
.end_amdhsa_kernel
""")

def parse_opts(args):
    kw = {}
    for x in args:
        if "=" in x:
            k, val = x.split("=", 1)
            try: kw[k] = int(val)
            except ValueError: kw[k] = val
    return kw
if __name__ == "__main__":
    args = [x for x in sys.argv[1:] if "=" not in x]; kw = parse_opts(sys.argv[1:])
    out = args[0] if args else f"cdna_kernels/{NAME}.s"
    open(out, "w").write(Gen(stamps=bool(kw.get("dbg")), **kw).build())
```

```python
import sys, json
sys.path.insert(0, "dev")
import gen3 as gm
cfg = json.load(open(sys.argv[1]))["best"]; cfg.update(gm.parse_opts(sys.argv[3:]))
if sys.argv[2] != "-": open(sys.argv[2], "w").write(gm.Gen(stamps=False, **cfg).build())
print(" ".join(f"{k}={v}" for k, v in cfg.items()))
```
